```python
import torch

def _softmax(x, axis=-1):
    return torch.softmax(x, dim=axis)

def _gelu(x):
    return torch.nn.functional.gelu(x, approximate='tanh')

def _silu(x):
    return torch.nn.functional.silu(x)

def _sigmoid(x):
    return torch.sigmoid(x)

def _layernorm(x, axis=-1, eps=1e-05):
    m = x.mean(dim=axis, keepdim=True)
    v = x.var(dim=axis, keepdim=True, unbiased=False)
    return (x - m) / torch.sqrt(v + eps)

def _scatter_add(tgt, idx, src, axis=0):
    return tgt.clone().index_add_(axis, idx, src)

def _segment_sum(src, seg, n):
    out = torch.zeros((n,) + src.shape[1:], dtype=src.dtype)
    return out.index_add_(0, seg, src)

def _pad(x, pw):
    flat = tuple((v for pair in reversed(pw) for v in pair))
    return torch.nn.functional.pad(x, flat)
kernel_name = 'adaLN_cond__sliding_block_cached__mixer_token_mlp__decode'

def setup_inputs():

    _w = lambda a: (lambda t: t.to(torch.bfloat16) if t.is_floating_point() else t)(torch.as_tensor(a))

    def _A_setup():
        B, Sq, D = (1, 1, 576)
        Hq, Hkv, Sk, Dh = (32, 16, 8192, 128)
        assert Hq % Hkv == 0, (Hq, Hkv)
        return {'x': _w((lambda *s: torch.randn(*s, dtype=torch.bfloat16) * 0.05)(B, Sq, D)), 'k_cache': _w((lambda *s: torch.randn(*s, dtype=torch.bfloat16) * 1.6)(B, Hkv, Sk, Dh)), 'v_cache': _w((lambda *s: torch.randn(*s, dtype=torch.bfloat16) * 1.6)(B, Hkv, Sk, Dh)), 'wq': _w((lambda *s: torch.randn(*s, dtype=torch.bfloat16) * 1.6)(D, Hq * Dh) * D ** (-0.5)), 'wo': _w((lambda *s: torch.randn(*s, dtype=torch.bfloat16) * 1.6)(Hq * Dh, D) * (Hq * Dh) ** (-0.5))}
    _A_in = _A_setup()

    def _B_setup():
        B, S, D, F = (1, 1, 576, 4608)
        return {'x': _w((lambda *s: torch.randn(*s, dtype=torch.bfloat16) * 0.05)(B, S, D)), 'w1': _w((lambda *s: torch.randn(*s, dtype=torch.bfloat16) * 1.6)(S, F) * S ** (-0.5)), 'b1': _w((lambda *s: torch.randn(*s, dtype=torch.bfloat16) * 1.6)(F) * 0.02), 'w2': _w((lambda *s: torch.randn(*s, dtype=torch.bfloat16) * 1.6)(F, S) * F ** (-0.5)), 'b2': _w((lambda *s: torch.randn(*s, dtype=torch.bfloat16) * 1.6)(S) * 0.02)}
    _B_in = _B_setup()
    return {'A_x': _A_in['x'], 'A_k_cache': _A_in['k_cache'], 'A_v_cache': _A_in['v_cache'], 'A_wq': _A_in['wq'], 'A_wo': _A_in['wo'], 'B_x': _B_in['x'], 'B_w1': _B_in['w1'], 'B_b1': _B_in['b1'], 'B_w2': _B_in['w2'], 'B_b2': _B_in['b2'], 'c': _w((lambda *s: torch.randn(*s, dtype=torch.bfloat16) * 0.05)(1, 576) * 8.0), 'w_mod': _w((lambda *s: torch.randn(*s, dtype=torch.bfloat16) * 0.05)(576, 6 * 576) * 576 ** (-0.5) * 8.0)}

def reference(A_x, A_k_cache, A_v_cache, A_wq, A_wo, B_x, B_w1, B_b1, B_w2, B_b2, c, w_mod):

    def _A_ref(x, k_cache, v_cache, wq, wo):
        B, Sq, D = x.shape
        Hq, Dh = (32, 128)
        Hkv, Sk = (k_cache.shape[1], k_cache.shape[2])
        W = min(4096, max(256, Sk // 4))
        rep = Hq // Hkv
        q = (lambda x, *d: x.permute(*d))((x @ wq).reshape(B, Sq, Hq, Dh), 0, 2, 1, 3)
        k = (lambda x, n, axis: torch.repeat_interleave(x, n, dim=axis))(k_cache[:, :, Sk - W:, :], rep, axis=1)
        v = (lambda x, n, axis: torch.repeat_interleave(x, n, dim=axis))(v_cache[:, :, Sk - W:, :], rep, axis=1)
        scores = torch.einsum('bhqd,bhkd->bhqk', q, k) * Dh ** (-0.5)
        p = _softmax(scores, axis=-1)
        o = torch.einsum('bhqk,bhkd->bhqd', p, v)
        return (lambda x, *d: x.permute(*d))(o, 0, 2, 1, 3).reshape(B, Sq, Hq * Dh) @ wo

    def _B_ref(x, w1, b1, w2, b2):
        B, S, D = x.shape
        h = _layernorm(x, axis=-1)
        u = torch.einsum('bsd,sf->bdf', h, w1) + b1
        u = _gelu(u)
        y = torch.einsum('bdf,fs->bds', u, w2) + b2
        return (lambda x, *d: x.permute(*d))(y, 0, 2, 1)
    x = A_x
    mod = (_silu(c) @ w_mod).reshape(c.shape[0], 6, 1, -1)
    sa, ca, ga, sb, cb, gb = (mod[:, 0].clone(), mod[:, 1].clone(), mod[:, 2].clone(), mod[:, 3].clone(), mod[:, 4].clone(), mod[:, 5].clone())
    h = _layernorm(x, axis=-1) * (1 + ca) + sa
    x = x + ga * _A_ref(h, A_k_cache, A_v_cache, A_wq, A_wo)
    h = _layernorm(x, axis=-1) * (1 + cb) + sb
    x = x + gb * _B_ref(h, B_w1, B_b1, B_w2, B_b2)
    return x
```

```python
import sys, struct
NAME = 'adaLN_cond__sliding_block_cached__mixer_token_mlp__decode'

def f2u(x):
    return struct.unpack('<I', struct.pack('<f', x))[0]

class Gen:
    def __init__(self, stamps=False):
        self.L = []
        self.stamps = stamps
        self.nstamp = 0
        self.uid = 0
    def A(self, s):
        self.L.append('    ' + s)
    def lab(self, s):
        self.L.append(s + ':')
    def newlab(self, p):
        self.uid += 1
        return f'L_{p}_{self.uid}'
    def nop(self, n):
        while n > 0:
            k = min(n, 16)
            self.A(f's_nop {k-1}')
            n -= k

H0 = 0x00000
H1 = 0x10000
H2O = 0x40000
H2M = 0x60000
H3 = 0x61000
HM = 0x6A000
STAMP = 0x8000000
VEC = 0x0000
SOP = 0x0200
WMAX = 0x0700
WSUM = 0x0740
OPART = 0x0800
AREST = 0x2800
RED1 = 0x2C00
RED2 = 0x2C80
HV = 0x2D00
X1V = 0x3600
GBV = 0x3F00
YRED = 0x4800
LDS_BYTES = 0x4900
SPIN = 1 << 17

S_WAVE, S_ROLE, S_IDX = 3, 4, 5
P_X, P_K, P_V, P_WQ, P_WO, P_BX, P_W1, P_B1, P_W2, P_B2, P_C, P_WM, P_OUT, P_DBG, P_WS = [16 + 2*i for i in range(15)]
SRD_WS, SRD_WM, SRD_WQ, SRD_WO = 48, 52, 56, 60
S_T = 64
S_A, S_B, S_C, S_D, S_E, S_F = 65, 66, 67, 68, 69, 70
S_SPIN = 71
S_PLO, S_PHI = 72, 73
S_G, S_KS, S_I, S_GRP, S_L0, S_NT = 74, 75, 76, 77, 78, 79
S_H = 6
S_EI = 9
S_SAVE = 10
S_ST = 80

def sp(r): return f's[{r}:{r+1}]'
def sq(r): return f's[{r}:{r+3}]'
def vr(r, n=1): return f'v{r}' if n == 1 else f'v[{r}:{r+n-1}]'

def build(stamps=False):
    g = Gen(stamps)
    A = g.A
    def stamp(k):
        if stamps:
            assert k < 11
            A(f's_memrealtime s[{S_ST+2*k}:{S_ST+2*k+1}]')
    V_LANE = 1; V_T0 = 2; V_T1 = 3; V_T2 = 4; V_T3 = 5; V_T4 = 6; V_T5 = 7
    V_HB = 8
    V_ADDR = 9; V_ADDR2 = 10; V_L16 = 11; V_L4 = 12; V_OPA = 13
    V_VEC = 16
    V_ACC = 32
    V_R0 = 64
    V_R1 = 96
    V_R2 = 128
    V_R3 = 32
    V_AR = 160
    NVGPR = 168

    def tile_loads_buf(dst, vaddr, srd, stride, nt=True):
        for t in range(8):
            off = t * stride
            if off < 4096:
                A(f'buffer_load_dwordx4 {vr(dst+4*t,4)}, v{vaddr}, {sq(srd)}, 0 offen offset:{off}' + (' nt' if nt else ''))
            else:
                A(f's_mov_b32 s{S_T}, {off}')
                A(f'buffer_load_dwordx4 {vr(dst+4*t,4)}, v{vaddr}, {sq(srd)}, s{S_T} offen' + (' nt' if nt else ''))

    def tile_perm(src, dst, after=None):
        for tp in range(4):
            if after: after(tp)
            for q in range(4):
                a = src + 4*(2*tp) + q; b = src + 4*(2*tp+1) + q
                A(f'v_perm_b32 v{dst+4*(2*q)+tp}, v{b}, v{a}, s{S_PLO}')
                A(f'v_perm_b32 v{dst+4*(2*q+1)+tp}, v{b}, v{a}, s{S_PHI}')

    def tile_mfma(tr, vec, acc):
        for j in range(8):
            A(f'v_mfma_f32_16x16x32_bf16 {vr(acc+4*j,4)}, {vr(vec,4)}, {vr(tr+4*j,4)}, 0')

    def hb_combine(acc, out):
        for j in range(8):
            A(f'v_add_f32_dpp v{out+j}, v{acc+4*j+1}, v{acc+4*j} row_ror:8 row_mask:0xf bank_mask:0xf')

    def spin_guard(lab_fail):
        A(f's_sub_u32 s{S_SPIN}, s{S_SPIN}, 1')
        A(f's_cbranch_scc1 {lab_fail}')

    def rnd(d, s):
        A(f'v_cvt_pk_bf16_f32 v{d}, 0, v{s}')

    def wave_sum2(a, b, t0, t1):
        for sh in (1, 2, 4, 8):
            g.nop(1)
            A(f'v_add_f32_dpp v{a}, v{a}, v{a} row_ror:{sh} row_mask:0xf bank_mask:0xf')
            A(f'v_add_f32_dpp v{b}, v{b}, v{b} row_ror:{sh} row_mask:0xf bank_mask:0xf')
        for sw in ('v_permlane16_swap_b32', 'v_permlane32_swap_b32'):
            A(f'v_mov_b32 v{t0}, v{a}')
            A(f'v_mov_b32 v{t1}, v{b}')
            g.nop(1)
            A(f'{sw} v{a}, v{t0}')
            A(f'{sw} v{b}, v{t1}')
            g.nop(1)
            A(f'v_add_f32 v{a}, v{a}, v{t0}')
            A(f'v_add_f32 v{b}, v{b}, v{t1}')

    def silu_operand(rt_sgpr, wave_slot_sgpr, vdst, vc):
        A(f'v_lshlrev_b32 v{vc}, 16, v{vc}')
        A(f'v_mul_f32 v{V_T0}, {hex(f2u(-1.4426950408889634))}, v{vc}')
        A(f'v_exp_f32 v{V_T0}, v{V_T0}')
        g.nop(1)
        A(f'v_add_f32 v{V_T0}, 1.0, v{V_T0}')
        A(f'v_rcp_f32 v{V_T0}, v{V_T0}')
        g.nop(1)
        A(f'v_mul_f32 v{V_T0}, v{vc}, v{V_T0}')
        A(f'v_cvt_pk_bf16_f32 v{V_T0}, v{V_T0}, v{V_T0}')
        A(f's_lshl_b32 s{S_A}, s{wave_slot_sgpr}, 7')
        A(f's_add_u32 s{S_A}, s{S_A}, {SOP}')
        A(f'v_lshl_add_u32 v{V_T1}, v{V_LANE}, 1, s{S_A}')
        A(f'ds_write_b16 v{V_T1}, v{V_T0}')
        A(f'v_add_u32 v{V_T1}, s{S_A}, v{V_OPA}')
        A(f'ds_read_b128 {vr(vdst,4)}, v{V_T1}')

    H = []
    H.append(f'; @launch grid=(256,1,1) block=(576,1,1) lds={LDS_BYTES}')
    H.append('.amdgcn_target "amdgcn-amd-amdhsa--gfx950"')
    H.append('.text')
    H.append(f'.globl {NAME}_kernel')
    H.append('.p2align 8')
    H.append(f'.type {NAME}_kernel,@function')
    H.append(f'{NAME}_kernel:')
    stamp(0)
    A('s_cmp_ge_u32 s2, 256')
    A('s_cbranch_scc1 L_end')
    A('s_load_dwordx16 s[16:31], s[0:1], 0')
    A('s_load_dwordx8 s[32:39], s[0:1], 64')
    A('s_load_dwordx4 s[40:43], s[0:1], 96')
    A('s_load_dwordx2 s[44:45], s[0:1], 112')
    A(f'v_lshrrev_b32 v{V_T0}, 6, v0')
    A(f'v_and_b32 v{V_LANE}, 63, v0')
    A(f'v_readfirstlane_b32 s{S_WAVE}, v{V_T0}')
    A(f's_lshr_b32 s{S_ROLE}, s2, 3'); A(f's_and_b32 s{S_ROLE}, s{S_ROLE}, 1')
    A(f's_lshr_b32 s{S_IDX}, s2, 4'); A(f's_lshl_b32 s{S_IDX}, s{S_IDX}, 3'); A(f's_and_b32 s{S_A}, s2, 7'); A(f's_or_b32 s{S_IDX}, s{S_IDX}, s{S_A}')
    A(f's_mov_b32 s{S_PLO}, 0x05040100'); A(f's_mov_b32 s{S_PHI}, 0x07060302')
    A(f's_mov_b32 s{S_SPIN}, {SPIN}')
    A(f'v_lshlrev_b32 v{V_L16}, 4, v{V_LANE}')
    A(f'v_lshlrev_b32 v{V_L4}, 2, v{V_LANE}')
    A(f'v_lshrrev_b32 v{V_T0}, 4, v{V_LANE}')
    A(f'v_and_b32 v{V_T1}, 1, v{V_LANE}')
    A(f'v_lshlrev_b32 v{V_T0}, 5, v{V_T0}')
    A(f'v_lshl_add_u32 v{V_OPA}, v{V_T1}, 4, v{V_T0}')
    A(f's_lshr_b32 s{S_G}, s{S_IDX}, 3'); A(f's_and_b32 s{S_KS}, s{S_IDX}, 7')
    A(f's_mul_i32 s{S_GRP}, s{S_IDX}, 7282'); A(f's_lshr_b32 s{S_GRP}, s{S_GRP}, 16')
    A(f's_mul_i32 s{S_A}, s{S_GRP}, 9'); A(f's_sub_u32 s{S_I}, s{S_IDX}, s{S_A}')
    A(f's_mul_i32 s{S_A}, s{S_GRP}, 5'); A(f's_lshl_b32 s{S_B}, s{S_GRP}, 2'); A(f's_add_u32 s{S_B}, s{S_B}, 8')
    A(f's_cmp_lt_u32 s{S_GRP}, 8'); A(f's_cselect_b32 s{S_L0}, s{S_A}, s{S_B}'); A(f's_cselect_b32 s{S_NT}, 5, 4')
    A(f's_cmp_lt_u32 s{S_GRP}, 14'); A(f's_cselect_b32 s{S_NT}, s{S_NT}, 0')
    A(f's_add_u32 s{S_A}, s{S_IDX}, 128'); A(f's_cmp_lt_u32 s{S_IDX}, 64'); A(f's_cselect_b32 s{S_A}, s{S_A}, -1')
    A(f's_cmp_eq_u32 s{S_ROLE}, 1'); A(f's_cselect_b32 s{S_EI}, s{S_IDX}, s{S_A}')
    A('s_waitcnt lgkmcnt(0)')
    stamp(1)
    for srd, p, n in ((SRD_WS, P_WS, 0x10000000), (SRD_WM, P_WM, 576*3456*2), (SRD_WQ, P_WQ, 576*4096*2), (SRD_WO, P_WO, 4096*576*2)):
        A(f's_mov_b32 s{srd}, s{p}'); A(f's_mov_b32 s{srd+1}, s{p+1}'); A(f's_mov_b32 s{srd+2}, {hex(n)}'); A(f's_mov_b32 s{srd+3}, 0x00020000')
    A(f's_cmp_eq_u32 s{S_WAVE}, 8'); A('s_cbranch_scc1 L_W8')
    A(f's_cmp_eq_u32 s{S_ROLE}, 1'); A('s_cbranch_scc1 L_S')
    A('s_branch L_C')

    def hb_lane_off(vdst, stride):
        A(f'v_lshrrev_b32 v{V_T0}, 3, v{V_LANE}')
        A(f'v_mul_u32_u24 v{V_T0}, {8*stride}, v{V_T0}')
        A(f'v_and_b32 v{V_T1}, 7, v{V_LANE}')
        A(f'v_lshl_add_u32 v{vdst}, v{V_T1}, 4, v{V_T0}')

    def publish64(out, s_off_expr_reg):
        for j in range(8):
            A(f'v_min_u32 v{out+j}, 0xfffffffe, v{out+j}')
        A(f'v_lshlrev_b32 v{V_T0}, 5, v{V_LANE}')
        A('s_mov_b64 exec, 0xff')
        A(f'buffer_store_dwordx4 {vr(out,4)}, v{V_T0}, {sq(SRD_WS)}, s{s_off_expr_reg} offen sc1')
        A(f'buffer_store_dwordx4 {vr(out+4,4)}, v{V_T0}, {sq(SRD_WS)}, s{s_off_expr_reg} offen offset:16 sc1')
        A('s_mov_b64 exec, -1')

    g.lab('L_W8')
    SENT = V_ACC
    for k in range(4): A(f'v_mov_b32 v{SENT+k}, -1')
    def clear256(sreg):
        A(f'buffer_store_dwordx4 {vr(SENT,4)}, v{V_L16}, {sq(SRD_WS)}, s{sreg} offen sc1')
    A(f's_add_u32 s{S_A}, s{S_IDX}, 128'); A(f's_cmp_eq_u32 s{S_ROLE}, 1'); A(f's_cselect_b32 s{S_F}, s{S_IDX}, s{S_A}')
    A(f's_mul_i32 s{S_E}, s{S_F}, 3641'); A(f's_lshr_b32 s{S_E}, s{S_E}, 16')
    A(f's_mul_i32 s{S_A}, s{S_E}, 18'); A(f's_sub_u32 s{S_D}, s{S_F}, s{S_A}')
    A(f's_cmp_lt_u32 s{S_F}, 162'); A('s_cbranch_scc0 L_W8_noAload')
    V_C = V_T5
    A(f's_lshl_b32 s{S_A}, s{S_E}, 7')
    A(f'v_lshl_add_u32 v{V_T2}, v{V_LANE}, 1, s{S_A}')
    A(f'global_load_ushort v{V_C}, v{V_T2}, {sp(P_C)}')
    hb_lane_off(V_ADDR, 6912)
    A(f's_mul_i32 s{S_A}, s{S_E}, {64*6912}'); A(f's_lshl_b32 s{S_B}, s{S_D}, 7'); A(f's_add_u32 s{S_A}, s{S_A}, s{S_B}')
    A(f'v_add_u32 v{V_ADDR}, s{S_A}, v{V_ADDR}')
    tile_loads_buf(V_R0, V_ADDR, SRD_WM, 6912)
    g.lab('L_W8_noAload')
    A('s_mov_b64 exec, 0xffff')
    A(f's_mul_i32 s{S_C}, s{S_D}, 9'); A(f's_add_u32 s{S_C}, s{S_C}, s{S_E}'); A(f's_lshl_b32 s{S_C}, s{S_C}, 8'); A(f's_add_u32 s{S_C}, s{S_C}, {H0}')
    A(f's_cmp_lt_u32 s{S_F}, 162'); A('s_cbranch_scc0 L_W8_noH0clr')
    clear256(S_C)
    g.lab('L_W8_noH0clr')
    A(f's_cmp_eq_u32 s{S_ROLE}, 1'); A('s_cbranch_scc0 L_W8_clrC')
    for h in range(2):
        A(f's_lshl_b32 s{S_A}, s{S_G}, 1'); A(f's_add_u32 s{S_A}, s{S_A}, {h}'); A(f's_lshl_b32 s{S_A}, s{S_A}, 3'); A(f's_add_u32 s{S_A}, s{S_A}, s{S_KS}')
        A(f's_lshl_b32 s{S_B}, s{S_A}, 9'); A(f's_add_u32 s{S_B}, s{S_B}, {H2O}')
        A('s_mov_b32 exec_lo, -1'); A('s_mov_b32 exec_hi, 0')
        clear256(S_B)
        A(f's_lshl_b32 s{S_B}, s{S_A}, 3'); A(f's_add_u32 s{S_B}, s{S_B}, {H2M}')
        A('s_mov_b64 exec, 1')
        A(f'buffer_store_dwordx2 {vr(SENT,2)}, v{V_L16}, {sq(SRD_WS)}, s{S_B} offen sc1')
    A(f's_cmp_lt_u32 s{S_IDX}, 108'); A('s_cbranch_scc0 L_W8_clrdone')
    A(f's_mul_i32 s{S_A}, s{S_IDX}, 1821'); A(f's_lshr_b32 s{S_A}, s{S_A}, 16')
    A(f's_mul_i32 s{S_B}, s{S_A}, 36'); A(f's_sub_u32 s{S_B}, s{S_IDX}, s{S_B}')
    A(f's_mul_i32 s{S_A}, s{S_A}, 9216'); A(f's_lshl_b32 s{S_B}, s{S_B}, 8'); A(f's_add_u32 s{S_A}, s{S_A}, s{S_B}'); A(f's_add_u32 s{S_A}, s{S_A}, {HM}')
    A('s_mov_b64 exec, 0xffff')
    clear256(S_A)
    A('s_branch L_W8_clrdone')
    g.lab('L_W8_clrC')
    A(f's_cmp_eq_u32 s{S_NT}, 0'); A('s_cbranch_scc1 L_W8_clrdone')
    for w in range(5):
        if w == 4:
            A(f's_cmp_lt_u32 s{S_NT}, 5'); A('s_cbranch_scc1 L_W8_clrC4')
        A(f's_add_u32 s{S_A}, s{S_L0}, {w}'); A(f's_lshr_b32 s{S_B}, s{S_A}, 2'); A(f's_mul_i32 s{S_B}, s{S_B}, 9'); A(f's_add_u32 s{S_B}, s{S_B}, s{S_I}')
        A(f's_lshl_b32 s{S_B}, s{S_B}, 10'); A(f's_and_b32 s{S_A}, s{S_A}, 3'); A(f's_lshl_b32 s{S_A}, s{S_A}, 8'); A(f's_add_u32 s{S_B}, s{S_B}, s{S_A}'); A(f's_add_u32 s{S_B}, s{S_B}, {H1}')
        clear256(S_B)
    g.lab('L_W8_clrC4')
    A(f's_mul_i32 s{S_A}, s{S_GRP}, 2304'); A(f's_lshl_b32 s{S_B}, s{S_I}, 8'); A(f's_add_u32 s{S_A}, s{S_A}, s{S_B}'); A(f's_add_u32 s{S_A}, s{S_A}, {H3}')
    clear256(S_A)
    g.lab('L_W8_clrdone')
    A('s_mov_b64 exec, -1')
    A(f's_cmp_lt_u32 s{S_F}, 162'); A('s_cbranch_scc0 L_W8_noA')
    A('s_waitcnt vmcnt(0)')
    A(f'v_mov_b32 v{V_T2}, s2'); A(f'v_mov_b32 v{V_T3}, 1')
    A('s_mov_b64 exec, 1')
    A(f'global_store_byte v{V_T2}, v{V_T3}, {sp(P_DBG)} sc1')
    A('s_mov_b64 exec, -1')
    silu_operand(S_E, S_WAVE, V_VEC, V_C)
    tile_perm(V_R0, V_R2)
    A('s_waitcnt lgkmcnt(0)')
    g.nop(2)
    tile_mfma(V_R2, V_VEC, V_ACC)
    g.nop(8)
    hb_combine(V_ACC, V_R0)
    publish64(V_R0, S_C)
    stamp(2)
    A('s_branch L_W8_flagdone')
    g.lab('L_W8_noA')
    A('s_waitcnt vmcnt(0)')
    A(f'v_mov_b32 v{V_T2}, s2'); A(f'v_mov_b32 v{V_T3}, 1')
    A('s_mov_b64 exec, 1')
    A(f'global_store_byte v{V_T2}, v{V_T3}, {sp(P_DBG)} sc1')
    A('s_mov_b64 exec, -1')
    g.lab('L_W8_flagdone')
    A(f's_cmp_eq_u32 s{S_ROLE}, 1'); A('s_cbranch_scc1 L_W8_flags')
    XR = V_R1
    A(f'v_lshlrev_b32 v{V_T2}, 1, v{V_LANE}')
    for k in range(9):
        A(f'global_load_ushort v{XR+k}, v{V_T2}, {sp(P_X)} offset:{128*k}')
    A(f's_lshl_b32 s{S_A}, s{S_I}, 7')
    A(f'v_add_u32 v{V_T3}, s{S_A}, v{V_T2}')
    A(f'global_load_ushort v{XR+9}, v{V_T3}, {sp(P_X)}')
    A('s_waitcnt vmcnt(0)')
    for k in range(10): A(f'v_lshlrev_b32 v{XR+k}, 16, v{XR+k}')
    g.nop(1)
    A(f'v_readfirstlane_b32 s{S_A}, v{XR}')
    g.nop(2)
    for k in range(9): A(f'v_subrev_f32 v{XR+k}, s{S_A}, v{XR+k}')
    A(f'v_mov_b32 v{V_T2}, v{XR}'); A(f'v_mul_f32 v{V_T3}, v{XR}, v{XR}')
    for k in range(1, 9):
        A(f'v_add_f32 v{V_T2}, v{V_T2}, v{XR+k}'); A(f'v_fmac_f32 v{V_T3}, v{XR+k}, v{XR+k}')
    wave_sum2(V_T2, V_T3, V_T0, V_T1)
    def ln_stats(s1, s2, kreg_is_sgpr, kreg, mean_out, rstd_out, t):
        A(f'v_mul_f32 v{s1}, {hex(f2u(1.0/576))}, v{s1}')
        A(f'v_mul_f32 v{s2}, {hex(f2u(1.0/576))}, v{s2}')
        A(f'v_fma_f32 v{s2}, -v{s1}, v{s1}, v{s2}')
        A(f'v_max_f32 v{s2}, 0, v{s2}')
        if kreg_is_sgpr: A(f'v_add_f32 v{mean_out}, s{kreg}, v{s1}')
        else: A(f'v_add_f32 v{mean_out}, v{kreg}, v{s1}')
        rnd(mean_out, mean_out)
        rnd(s2, s2)
        A(f'v_add_f32 v{s2}, {hex(f2u(1e-5))}, v{s2}')
        rnd(s2, s2)
        A(f'v_sqrt_f32 v{s2}, v{s2}')
        g.nop(1)
        rnd(s2, s2)
        A(f'v_rcp_f32 v{rstd_out}, v{s2}')
        g.nop(1)
    ln_stats(V_T2, V_T3, True, S_A, V_T4, V_T5, V_T0)
    A(f'v_sub_f32 v{XR+9}, v{XR+9}, v{V_T4}'); rnd(XR+9, XR+9)
    A(f'v_mul_f32 v{XR+9}, v{XR+9}, v{V_T5}'); rnd(XR+9, XR+9)
    g.lab('L_W8_flags')
    A(f'global_load_dword v{V_T2}, v{V_L4}, {sp(P_DBG)} sc1')
    A('s_waitcnt vmcnt(0)')
    A(f'v_cmp_ne_u32 vcc, 0x01010101, v{V_T2}')
    A('s_cmp_eq_u64 vcc, 0'); A('s_cbranch_scc1 L_W8_flagsok'); spin_guard('L_W8_flagsok'); A('s_branch L_W8_flags')
    g.lab('L_W8_flagsok')
    stamp(3)
    A(f's_cmp_eq_u32 s{S_ROLE}, 1'); A('s_cbranch_scc1 L_W8_S')
    A(f's_cmp_eq_u32 s{S_NT}, 0'); A('s_cbranch_scc1 L_W8_C_b1')
    A(f's_mul_i32 s{S_A}, s{S_I}, 2304'); A(f's_add_u32 s{S_A}, s{S_A}, {H0}'); A(f's_add_u32 s{S_B}, s{S_A}, {9*2304}')
    g.lab('L_W8_C_poll')
    P0 = V_R0
    for r in range(9):
        A(f'buffer_load_dword v{P0+r}, v{V_L4}, {sq(SRD_WS)}, s{S_A} offen offset:{256*r} sc1')
    for r in range(9):
        A(f'buffer_load_dword v{P0+9+r}, v{V_L4}, {sq(SRD_WS)}, s{S_B} offen offset:{256*r} sc1')
    A('s_waitcnt vmcnt(0)')
    A(f'v_max3_u32 v{V_T2}, v{P0}, v{P0+1}, v{P0+2}')
    for r in range(3, 17, 2): A(f'v_max3_u32 v{V_T2}, v{V_T2}, v{P0+r}, v{P0+r+1}')
    A(f'v_max_u32 v{V_T2}, v{V_T2}, v{P0+17}')
    A(f'v_cmp_eq_u32 vcc, -1, v{V_T2}')
    A('s_cmp_eq_u64 vcc, 0'); A('s_cbranch_scc1 L_W8_C_ok'); spin_guard('L_W8_C_ok'); A('s_branch L_W8_C_poll')
    g.lab('L_W8_C_ok')
    stamp(4)
    for r in range(1, 9):
        A(f'v_add_f32 v{P0}, v{P0}, v{P0+r}'); A(f'v_add_f32 v{P0+9}, v{P0+9}, v{P0+9+r}')
    rnd(P0, P0); rnd(P0+9, P0+9)
    A(f'v_add_f32 v{P0+9}, 1.0, v{P0+9}'); rnd(P0+9, P0+9)
    A(f'v_mul_f32 v{V_T2}, v{XR+9}, v{P0+9}'); rnd(V_T2, V_T2)
    A(f'v_add_f32 v{V_T2}, v{V_T2}, v{P0}')
    A(f'v_cvt_pk_bf16_f32 v{V_T2}, v{V_T2}, v{V_T2}')
    A(f'v_lshlrev_b32 v{V_T3}, 1, v{V_LANE}')
    A(f'ds_write_b16 v{V_T3}, v{V_T2} offset:{VEC}')
    A('s_waitcnt lgkmcnt(0)')
    g.lab('L_W8_C_b1')
    A('s_barrier')
    A('s_barrier')
    A(f's_cmp_eq_u32 s{S_NT}, 0'); A('s_cbranch_scc1 L_E')
    for w in range(5):
        A(f'ds_read_b128 {vr(V_R0+4*w,4)}, v{V_L16} offset:{OPART+256*w}')
    A(f's_mul_i32 s{S_A}, s{S_GRP}, 2304'); A(f's_lshl_b32 s{S_B}, s{S_I}, 8'); A(f's_add_u32 s{S_A}, s{S_A}, s{S_B}'); A(f's_add_u32 s{S_A}, s{S_A}, {H3}')
    A('s_waitcnt lgkmcnt(0)')
    for k in range(4):
        A(f'v_add_f32 v{V_R0+k}, v{V_R0+k}, v{V_R0+4+k}'); A(f'v_add_f32 v{V_R0+8+k}, v{V_R0+8+k}, v{V_R0+12+k}')
    for k in range(4):
        A(f'v_add_f32 v{V_R0+k}, v{V_R0+k}, v{V_R0+16+k}')
    for k in range(4):
        A(f'v_add_f32 v{V_R0+k}, v{V_R0+k}, v{V_R0+8+k}')
    for k in range(4):
        A(f'v_min_u32 v{V_R0+k}, 0xfffffffe, v{V_R0+k}')
    A('s_mov_b64 exec, 0xffff')
    A(f'buffer_store_dwordx4 {vr(V_R0,4)}, v{V_L16}, {sq(SRD_WS)}, s{S_A} offen sc1')
    A('s_mov_b64 exec, -1')
    stamp(6)
    A('s_branch L_E')
    g.lab('L_W8_S')
    A(f's_mul_i32 s{S_A}, s{S_G}, 9216'); A(f's_add_u32 s{S_A}, s{S_A}, {H1}'); A(f's_add_u32 s{S_B}, s{S_A}, 4096'); A(f's_add_u32 s{S_C}, s{S_A}, 8192')
    g.lab('L_W8_S_poll')
    for r in range(9):
        sreg = (S_A, S_B, S_C)[r // 4]
        A(f'buffer_load_dwordx4 {vr(P0+4*r,4)}, v{V_L16}, {sq(SRD_WS)}, s{sreg} offen offset:{1024*(r%4)} sc1')
    A('s_waitcnt vmcnt(0)')
    A(f'v_max3_u32 v{V_T2}, v{P0}, v{P0+1}, v{P0+2}')
    for r in range(3, 35, 2): A(f'v_max3_u32 v{V_T2}, v{V_T2}, v{P0+r}, v{P0+r+1}')
    A(f'v_max_u32 v{V_T2}, v{V_T2}, v{P0+35}')
    A(f'v_cmp_eq_u32 vcc, -1, v{V_T2}')
    A('s_cmp_eq_u64 vcc, 0'); A('s_cbranch_scc1 L_W8_S_ok'); spin_guard('L_W8_S_ok'); A('s_branch L_W8_S_poll')
    g.lab('L_W8_S_ok')
    stamp(4)
    for r in range(1, 9):
        A(f'v_pk_add_f32 {vr(P0,2)}, {vr(P0,2)}, {vr(P0+4*r,2)}'); A(f'v_pk_add_f32 {vr(P0+2,2)}, {vr(P0+2,2)}, {vr(P0+4*r+2,2)}')
    A(f'v_cvt_pk_bf16_f32 v{V_T2}, v{P0}, v{P0+1}'); A(f'v_cvt_pk_bf16_f32 v{V_T3}, v{P0+2}, v{P0+3}')
    A(f'v_lshlrev_b32 v{V_T4}, 3, v{V_LANE}')
    A(f'ds_write_b64 v{V_T4}, {vr(V_T2,2)} offset:{VEC}')
    A('s_waitcnt lgkmcnt(0)')
    A('s_barrier')
    A('s_barrier')
    A(f'v_and_b32 v{V_T4}, 1, v{V_LANE}'); A(f'v_lshlrev_b32 v{V_T4}, 5, v{V_T4}')
    A(f'ds_read_b128 {vr(P0,4)}, v{V_T4} offset:{WMAX}'); A(f'ds_read_b128 {vr(P0+4,4)}, v{V_T4} offset:{WMAX+16}')
    A('s_waitcnt lgkmcnt(0)')
    A(f'v_max3_f32 v{V_T2}, v{P0}, v{P0+1}, v{P0+2}'); A(f'v_max3_f32 v{V_T2}, v{V_T2}, v{P0+3}, v{P0+4}'); A(f'v_max3_f32 v{V_T2}, v{V_T2}, v{P0+5}, v{P0+6}'); A(f'v_max_f32 v{V_T2}, v{V_T2}, v{P0+7}')
    A(f'v_lshrrev_b32 v{V_ADDR}, 5, v{V_LANE}'); A(f'v_lshlrev_b32 v{V_ADDR}, 12, v{V_ADDR}'); A(f'v_and_b32 v{V_T0}, 31, v{V_LANE}'); A(f'v_lshl_add_u32 v{V_ADDR}, v{V_T0}, 4, v{V_ADDR}')
    A(f's_lshl_b32 s{S_A}, s{S_G}, 4'); A(f's_add_u32 s{S_A}, s{S_A}, s{S_KS}')
    A(f's_lshl_b32 s{S_B}, s{S_A}, 3'); A(f's_add_u32 s{S_B}, s{S_B}, {H2M}')
    A(f's_lshl_b32 s{S_A}, s{S_A}, 9'); A(f's_add_u32 s{S_A}, s{S_A}, {H2O}')
    A(f'v_lshlrev_b32 v{V_ADDR2}, 6, v{V_LANE}')
    A('s_barrier')
    for w in range(8):
        A(f'ds_read_b128 {vr(P0+4*w,4)}, v{V_L16} offset:{OPART+1024*w}')
    A(f'ds_read_b128 {vr(V_R1,4)}, v{V_T4} offset:{WSUM}'); A(f'ds_read_b128 {vr(V_R1+4,4)}, v{V_T4} offset:{WSUM+16}')
    A('s_waitcnt lgkmcnt(6)')
    A(f'v_pk_add_f32 {vr(P0,2)}, {vr(P0,2)}, {vr(P0+4,2)}'); A(f'v_pk_add_f32 {vr(P0+2,2)}, {vr(P0+2,2)}, {vr(P0+6,2)}')
    A(f'v_pk_add_f32 {vr(P0+8,2)}, {vr(P0+8,2)}, {vr(P0+12,2)}'); A(f'v_pk_add_f32 {vr(P0+10,2)}, {vr(P0+10,2)}, {vr(P0+14,2)}')
    A('s_waitcnt lgkmcnt(2)')
    A(f'v_pk_add_f32 {vr(P0+16,2)}, {vr(P0+16,2)}, {vr(P0+20,2)}'); A(f'v_pk_add_f32 {vr(P0+18,2)}, {vr(P0+18,2)}, {vr(P0+22,2)}')
    A(f'v_pk_add_f32 {vr(P0+24,2)}, {vr(P0+24,2)}, {vr(P0+28,2)}'); A(f'v_pk_add_f32 {vr(P0+26,2)}, {vr(P0+26,2)}, {vr(P0+30,2)}')
    A(f'v_pk_add_f32 {vr(P0,2)}, {vr(P0,2)}, {vr(P0+8,2)}'); A(f'v_pk_add_f32 {vr(P0+2,2)}, {vr(P0+2,2)}, {vr(P0+10,2)}')
    A(f'v_pk_add_f32 {vr(P0+16,2)}, {vr(P0+16,2)}, {vr(P0+24,2)}'); A(f'v_pk_add_f32 {vr(P0+18,2)}, {vr(P0+18,2)}, {vr(P0+26,2)}')
    A(f'v_pk_add_f32 {vr(P0,2)}, {vr(P0,2)}, {vr(P0+16,2)}'); A(f'v_pk_add_f32 {vr(P0+2,2)}, {vr(P0+2,2)}, {vr(P0+18,2)}')
    for k in range(4): A(f'v_min_u32 v{P0+k}, 0xfffffffe, v{P0+k}')
    A(f'buffer_store_dwordx4 {vr(P0,4)}, v{V_ADDR}, {sq(SRD_WS)}, s{S_A} offen sc1')
    A('s_waitcnt lgkmcnt(0)')
    A(f'v_add_f32 v{V_T3}, v{V_R1}, v{V_R1+1}')
    for k in range(2, 8): A(f'v_add_f32 v{V_T3}, v{V_T3}, v{V_R1+k}')
    A(f'v_min_u32 v{V_T2}, 0xfffffffe, v{V_T2}'); A(f'v_min_u32 v{V_T3}, 0xfffffffe, v{V_T3}')
    A('s_mov_b64 exec, 3')
    A(f'buffer_store_dwordx2 {vr(V_T2,2)}, v{V_ADDR2}, {sq(SRD_WS)}, s{S_B} offen sc1')
    A('s_mov_b64 exec, -1')
    stamp(6)
    A(f's_cmp_lt_u32 s{S_IDX}, 108'); A('s_cbranch_scc0 L_E')
    A(f's_mul_i32 s{S_A}, s{S_IDX}, 1821'); A(f's_lshr_b32 s{S_A}, s{S_A}, 16')
    A(f's_mul_i32 s{S_B}, s{S_A}, 36'); A(f's_sub_u32 s{S_B}, s{S_IDX}, s{S_B}')
    A(f's_mul_i32 s{S_A}, s{S_A}, 9216'); A(f's_lshl_b32 s{S_B}, s{S_B}, 8'); A(f's_add_u32 s{S_A}, s{S_A}, s{S_B}'); A(f's_add_u32 s{S_A}, s{S_A}, {HM}')
    A('s_barrier')
    for w in range(3):
        A(f'ds_read_b128 {vr(P0+4*w,4)}, v{V_L16} offset:{AREST+256*w}')
    A('s_waitcnt lgkmcnt(0)')
    for k in range(4): A(f'v_add_f32 v{P0+k}, v{P0+k}, v{P0+4+k}')
    for k in range(4): A(f'v_add_f32 v{P0+k}, v{P0+k}, v{P0+8+k}')
    for k in range(4): A(f'v_min_u32 v{P0+k}, 0xfffffffe, v{P0+k}')
    A('s_mov_b64 exec, 0xffff')
    A(f'buffer_store_dwordx4 {vr(P0,4)}, v{V_L16}, {sq(SRD_WS)}, s{S_A} offen sc1')
    A('s_mov_b64 exec, -1')
    stamp(7)
    A('s_branch L_E')

    g.lab('L_S')
    KR, VRR, VT = V_R0, V_R1, V_R2
    A(f's_lshl_b32 s{S_A}, s{S_G}, 21'); A(f's_lshl_b32 s{S_B}, s{S_KS}, 16'); A(f's_add_u32 s{S_A}, s{S_A}, s{S_B}')
    A(f's_lshl_b32 s{S_B}, s{S_WAVE}, 13'); A(f's_add_u32 s{S_A}, s{S_A}, s{S_B}'); A(f's_add_u32 s{S_A}, s{S_A}, {6144*256}')
    A(f'v_bfe_u32 v{V_T0}, v{V_LANE}, 2, 2'); A(f'v_lshlrev_b32 v{V_T0}, 11, v{V_T0}')
    A(f'v_and_b32 v{V_T1}, 3, v{V_LANE}'); A(f'v_lshl_add_u32 v{V_T0}, v{V_T1}, 8, v{V_T0}')
    A(f'v_lshrrev_b32 v{V_T1}, 4, v{V_LANE}'); A(f'v_lshl_add_u32 v{V_T0}, v{V_T1}, 4, v{V_T0}')
    A(f'v_add_u32 v{V_ADDR}, s{S_A}, v{V_T0}')
    for T in range(2):
        for kk in range(4):
            A(f'global_load_dwordx4 {vr(KR+16*T+4*kk,4)}, v{V_ADDR}, {sp(P_K)} offset:{1024*T+64*kk} nt')
    A(f'v_lshlrev_b32 v{V_T1}, 11, v{V_T1}'); A(f'v_and_b32 v{V_T0}, 15, v{V_LANE}'); A(f'v_lshl_add_u32 v{V_T0}, v{V_T0}, 4, v{V_T1}')
    A(f'v_add_u32 v{V_ADDR2}, s{S_A}, v{V_T0}')
    for t in range(8):
        A(f'global_load_dwordx4 {vr(VRR+4*t,4)}, v{V_ADDR2}, {sp(P_V)} offset:{256*t} nt')
    stamp(2)
    A(f'v_and_b32 v{V_T0}, 1, v{V_LANE}'); A(f'v_lshlrev_b32 v{V_T0}, 8, v{V_T0}'); A(f'v_lshrrev_b32 v{V_T1}, 4, v{V_LANE}'); A(f'v_lshl_add_u32 v{V_HB}, v{V_T1}, 4, v{V_T0}')
    A('s_waitcnt vmcnt(8)')
    stamp(3)
    A('s_barrier')
    for kk in range(4):
        A(f'ds_read_b128 {vr(V_VEC+4*kk,4)}, v{V_HB} offset:{VEC+64*kk}')
    SC = V_ACC
    for kk in range(4):
        A(f's_waitcnt lgkmcnt({3-kk})')
        for T in range(2):
            c = '0' if kk == 0 else vr(SC+4*T, 4)
            A(f'v_mfma_f32_16x16x32_bf16 {vr(SC+4*T,4)}, {vr(KR+16*T+4*kk,4)}, {vr(V_VEC+4*kk,4)}, {c}')
    stamp(4)
    g.nop(8)
    for k in range(8): rnd(SC+k, SC+k)
    for k in range(8): A(f'v_mul_f32 v{SC+k}, {hex(f2u(128**-0.5))}, v{SC+k}')
    for k in range(8): rnd(SC+k, SC+k)
    A(f'v_max3_f32 v{V_T2}, v{SC}, v{SC+1}, v{SC+2}'); A(f'v_max3_f32 v{V_T3}, v{SC+3}, v{SC+4}, v{SC+5}'); A(f'v_max3_f32 v{V_T2}, v{V_T2}, v{SC+6}, v{SC+7}'); A(f'v_max_f32 v{V_T2}, v{V_T2}, v{V_T3}')
    for sw in ('v_permlane16_swap_b32', 'v_permlane32_swap_b32'):
        A(f'v_mov_b32 v{V_T3}, v{V_T2}'); g.nop(2); A(f'{sw} v{V_T2}, v{V_T3}'); g.nop(1); A(f'v_max_f32 v{V_T2}, v{V_T2}, v{V_T3}')
    A(f's_lshl_b32 s{S_B}, s{S_WAVE}, 2')
    A(f'v_and_b32 v{V_T4}, 1, v{V_LANE}'); A(f'v_lshlrev_b32 v{V_T4}, 5, v{V_T4}'); A(f'v_add_u32 v{V_T5}, s{S_B}, v{V_T4}')
    A('s_mov_b64 exec, 3')
    A(f'ds_write_b32 v{V_T5}, v{V_T2} offset:{WMAX}')
    A('s_mov_b64 exec, -1')
    A('s_waitcnt lgkmcnt(0)')
    A('s_barrier')
    MX = V_VEC
    A(f'ds_read_b128 {vr(MX,4)}, v{V_T4} offset:{WMAX}'); A(f'ds_read_b128 {vr(MX+4,4)}, v{V_T4} offset:{WMAX+16}')
    A('s_waitcnt lgkmcnt(0)')
    A(f'v_max3_f32 v{V_T2}, v{MX}, v{MX+1}, v{MX+2}'); A(f'v_max3_f32 v{V_T3}, v{MX+3}, v{MX+4}, v{MX+5}'); A(f'v_max3_f32 v{V_T2}, v{V_T2}, v{MX+6}, v{MX+7}'); A(f'v_max_f32 v{V_T2}, v{V_T2}, v{V_T3}')
    A(f's_mov_b32 s{S_C}, {hex(f2u(1.4426950408889634))}')
    for k in range(8): A(f'v_sub_f32 v{SC+k}, v{SC+k}, v{V_T2}')
    for k in range(8): A(f'v_mul_f32 v{SC+k}, s{S_C}, v{SC+k}')
    for k in range(8): A(f'v_exp_f32 v{SC+k}, v{SC+k}')
    g.nop(1)
    PP = V_VEC + 8
    for k in range(4): A(f'v_cvt_pk_bf16_f32 v{PP+k}, v{SC+2*k}, v{SC+2*k+1}')
    A(f'v_add_f32 v{V_T2}, v{SC}, v{SC+1}'); A(f'v_add_f32 v{V_T3}, v{SC+2}, v{SC+3}')
    A(f'v_add_f32 v{V_T2}, v{V_T2}, v{SC+4}'); A(f'v_add_f32 v{V_T3}, v{V_T3}, v{SC+5}')
    A(f'v_add_f32 v{V_T2}, v{V_T2}, v{SC+6}'); A(f'v_add_f32 v{V_T3}, v{V_T3}, v{SC+7}')
    A(f'v_add_f32 v{V_T2}, v{V_T2}, v{V_T3}')
    for sw in ('v_permlane16_swap_b32', 'v_permlane32_swap_b32'):
        A(f'v_mov_b32 v{V_T3}, v{V_T2}'); g.nop(2); A(f'{sw} v{V_T2}, v{V_T3}'); g.nop(1); A(f'v_add_f32 v{V_T2}, v{V_T2}, v{V_T3}')
    A('s_mov_b64 exec, 3')
    A(f'ds_write_b32 v{V_T5}, v{V_T2} offset:{WSUM}')
    A('s_mov_b64 exec, -1')
    A(f's_cmp_lt_u32 s{S_IDX}, 108'); A(f's_cselect_b32 s{S_F}, 3, 0'); A(f's_cmp_lt_u32 s{S_WAVE}, s{S_F}'); A(f's_cselect_b32 s{S_F}, 1, 0')
    A('s_cbranch_scc0 L_S_noAR')
    A(f's_mul_i32 s{S_A}, s{S_IDX}, 1821'); A(f's_lshr_b32 s{S_A}, s{S_A}, 16')
    A(f's_mul_i32 s{S_B}, s{S_A}, 36'); A(f's_sub_u32 s{S_B}, s{S_IDX}, s{S_B}'); A(f's_add_u32 s{S_B}, s{S_B}, 18')
    A(f's_mul_i32 s{S_E}, s{S_A}, 3'); A(f's_add_u32 s{S_E}, s{S_E}, s{S_WAVE}')
    A(f's_lshl_b32 s{S_A}, s{S_E}, 7')
    A(f'v_lshl_add_u32 v{V_T2}, v{V_LANE}, 1, s{S_A}')
    A(f'global_load_ushort v14, v{V_T2}, {sp(P_C)}')
    hb_lane_off(V_ADDR, 6912)
    A(f's_mul_i32 s{S_A}, s{S_E}, {64*6912}'); A(f's_lshl_b32 s{S_B}, s{S_B}, 7'); A(f's_add_u32 s{S_A}, s{S_A}, s{S_B}')
    A(f'v_add_u32 v{V_ADDR}, s{S_A}, v{V_ADDR}')
    tile_loads_buf(KR, V_ADDR, SRD_WM, 6912)
    tile_perm(VRR, VT, after=lambda tp: A(f's_waitcnt vmcnt({9+6-2*tp})'))
    A('s_branch L_S_pv')
    g.lab('L_S_noAR')
    tile_perm(VRR, VT, after=lambda tp: A(f's_waitcnt vmcnt({6-2*tp})'))
    g.lab('L_S_pv')
    stamp(5)
    g.nop(2)
    tile_mfma(VT, PP, V_ACC)
    A(f's_lshl_b32 s{S_B}, s{S_WAVE}, 10'); A(f's_add_u32 s{S_B}, s{S_B}, {OPART}')
    A(f'v_lshl_add_u32 v{V_T2}, v{V_LANE}, 5, s{S_B}')
    A('s_mov_b64 exec, 0xffff')
    g.nop(4)
    for j in range(8):
        A(f'ds_write2_b32 v{V_T2}, v{V_ACC+4*j}, v{V_ACC+4*j+1} offset0:{j} offset1:{128+j}')
    A('s_mov_b64 exec, -1')
    A('s_waitcnt lgkmcnt(0)')
    A('s_barrier')
    stamp(6)
    A(f's_cmp_lt_u32 s{S_IDX}, 108'); A('s_cbranch_scc0 L_E')
    A(f's_cmp_eq_u32 s{S_F}, 0'); A('s_cbranch_scc1 L_S_b4')
    A('s_waitcnt vmcnt(8)')
    silu_operand(S_E, S_WAVE, V_VEC, 14)
    tile_perm(KR, VT, after=lambda tp: A(f's_waitcnt vmcnt({6-2*tp})'))
    A('s_waitcnt lgkmcnt(0)')
    g.nop(2)
    tile_mfma(VT, V_VEC, V_ACC)
    A(f's_lshl_b32 s{S_B}, s{S_WAVE}, 8'); A(f's_add_u32 s{S_B}, s{S_B}, {AREST}')
    A(f'v_lshl_add_u32 v{V_T2}, v{V_LANE}, 5, s{S_B}')
    g.nop(8)
    hb_combine(V_ACC, KR)
    A('s_mov_b64 exec, 0xff')
    A(f'ds_write_b128 v{V_T2}, {vr(KR,4)}'); A(f'ds_write_b128 v{V_T2}, {vr(KR+4,4)} offset:16')
    A('s_mov_b64 exec, -1')
    A('s_waitcnt lgkmcnt(0)')
    g.lab('L_S_b4')
    A('s_barrier')
    A('s_branch L_E')

    g.lab('L_C')
    A(f's_cmp_lt_u32 s{S_WAVE}, s{S_NT}'); A('s_cbranch_scc1 L_C_work')
    A('s_barrier')
    A(f's_cmp_eq_u32 s{S_WAVE}, 4'); A('s_cbranch_scc0 L_C_idle2')
    A(f'v_mov_b32 v{V_T2}, 0')
    A(f'ds_write_b32 v{V_L4}, v{V_T2} offset:{OPART+1024}')
    A('s_waitcnt lgkmcnt(0)')
    g.lab('L_C_idle2')
    A('s_barrier')
    A('s_branch L_E')
    g.lab('L_C_work')
    A(f's_add_u32 s{S_F}, s{S_L0}, s{S_WAVE}')
    hb_lane_off(V_ADDR, 8192)
    A(f's_lshl_b32 s{S_A}, s{S_I}, 19'); A(f's_lshl_b32 s{S_B}, s{S_F}, 7'); A(f's_add_u32 s{S_A}, s{S_A}, s{S_B}')
    A(f'v_add_u32 v{V_ADDR}, s{S_A}, v{V_ADDR}')
    tile_loads_buf(V_R0, V_ADDR, SRD_WQ, 8192)
    stamp(2)
    A(f's_lshr_b32 s{S_B}, s{S_F}, 2'); A(f's_mul_i32 s{S_B}, s{S_B}, 9'); A(f's_add_u32 s{S_B}, s{S_B}, s{S_I}')
    A(f's_lshl_b32 s{S_B}, s{S_B}, 10'); A(f's_and_b32 s{S_A}, s{S_F}, 3'); A(f's_lshl_b32 s{S_A}, s{S_A}, 8'); A(f's_add_u32 s{S_B}, s{S_B}, s{S_A}'); A(f's_add_u32 s{S_C}, s{S_B}, {H1}')
    hb_lane_off(V_ADDR2, 1152)
    A(f's_mul_i32 s{S_A}, s{S_F}, {64*1152}'); A(f's_lshl_b32 s{S_B}, s{S_I}, 7'); A(f's_add_u32 s{S_A}, s{S_A}, s{S_B}')
    A(f'v_add_u32 v{V_ADDR2}, s{S_A}, v{V_ADDR2}')
    tile_perm(V_R0, V_R2, after=lambda tp: A(f's_waitcnt vmcnt({6-2*tp})'))
    stamp(3)
    A('s_barrier')
    A(f'ds_read_b128 {vr(V_VEC,4)}, v{V_OPA} offset:{VEC}')
    A('s_waitcnt lgkmcnt(0)')
    tile_mfma(V_R2, V_VEC, V_ACC)
    g.nop(8)
    hb_combine(V_ACC, V_R0)
    publish64(V_R0, S_C)
    stamp(4)
    tile_loads_buf(V_R1, V_ADDR2, SRD_WO, 1152)
    A(f'v_bfe_u32 v{V_T0}, v{V_LANE}, 1, 3')
    A(f'v_lshlrev_b32 v{V_HB}, 3, v{V_T0}')
    A(f'v_lshlrev_b32 v{V_T0}, 9, v{V_T0}')
    A(f'v_lshl_add_u32 v{V_ADDR}, v{V_OPA}, 1, v{V_T0}')
    A(f's_lshr_b32 s{S_A}, s{S_F}, 1'); A(f's_lshl_b32 s{S_B}, s{S_A}, 6'); A(f's_add_u32 s{S_B}, s{S_B}, {H2M}')
    A(f's_lshl_b32 s{S_A}, s{S_A}, 12'); A(f's_and_b32 s{S_D}, s{S_F}, 1'); A(f's_lshl_b32 s{S_D}, s{S_D}, 8'); A(f's_add_u32 s{S_A}, s{S_A}, s{S_D}'); A(f's_add_u32 s{S_A}, s{S_A}, {H2O}')
    tile_perm(V_R1, V_R2, after=lambda tp: A(f's_waitcnt vmcnt({6-2*tp})'))
    stamp(5)
    OO = V_R0
    g.lab('L_C_poll2')
    A(f'buffer_load_dwordx4 {vr(OO,4)}, v{V_ADDR}, {sq(SRD_WS)}, s{S_A} offen sc1')
    A(f'buffer_load_dwordx4 {vr(OO+4,4)}, v{V_ADDR}, {sq(SRD_WS)}, s{S_A} offen offset:16 sc1')
    A(f'buffer_load_dwordx2 {vr(OO+8,2)}, v{V_HB}, {sq(SRD_WS)}, s{S_B} offen sc1')
    A('s_waitcnt vmcnt(0)')
    A(f'v_max3_u32 v{V_T2}, v{OO}, v{OO+1}, v{OO+2}'); A(f'v_max3_u32 v{V_T3}, v{OO+3}, v{OO+4}, v{OO+5}')
    A(f'v_max3_u32 v{V_T2}, v{V_T2}, v{OO+6}, v{OO+7}'); A(f'v_max3_u32 v{V_T3}, v{V_T3}, v{OO+8}, v{OO+9}')
    A(f'v_max_u32 v{V_T2}, v{V_T2}, v{V_T3}')
    A(f'v_cmp_eq_u32 vcc, -1, v{V_T2}')
    A('s_cmp_eq_u64 vcc, 0'); A('s_cbranch_scc1 L_C_ok2'); spin_guard('L_C_ok2'); A('s_branch L_C_poll2')
    g.lab('L_C_ok2')
    stamp(6)
    A(f'v_mov_b32 v{V_T2}, v{OO+8}')
    for sh in (2, 4, 8):
        g.nop(2)
        A(f'v_max_f32_dpp v{V_T2}, v{V_T2}, v{V_T2} row_ror:{sh} row_mask:0xf bank_mask:0xf')
    A(f'v_sub_f32 v{V_T2}, v{OO+8}, v{V_T2}')
    A(f'v_mul_f32 v{V_T2}, {hex(f2u(1.4426950408889634))}, v{V_T2}')
    A(f'v_exp_f32 v{V_T2}, v{V_T2}')
    g.nop(1)
    A(f'v_mul_f32 v{V_T3}, v{V_T2}, v{OO+9}')
    for k in range(8): A(f'v_mul_f32 v{OO+k}, v{OO+k}, v{V_T2}')
    for sh in (2, 4, 8):
        A(f'v_add_f32_dpp v{V_T3}, v{V_T3}, v{V_T3} row_ror:{sh} row_mask:0xf bank_mask:0xf')
        for k in range(8):
            A(f'v_add_f32_dpp v{OO+k}, v{OO+k}, v{OO+k} row_ror:{sh} row_mask:0xf bank_mask:0xf')
    A(f'v_rcp_f32 v{V_T3}, v{V_T3}')
    g.nop(1)
    for k in range(8): A(f'v_mul_f32 v{OO+k}, v{OO+k}, v{V_T3}')
    for k in range(4): A(f'v_cvt_pk_bf16_f32 v{V_VEC+k}, v{OO+2*k}, v{OO+2*k+1}')
    g.nop(2)
    tile_mfma(V_R2, V_VEC, V_ACC)
    A(f's_lshl_b32 s{S_B}, s{S_WAVE}, 8'); A(f's_add_u32 s{S_B}, s{S_B}, {OPART}')
    A(f'v_lshl_add_u32 v{V_T2}, v{V_LANE}, 5, s{S_B}')
    g.nop(8)
    hb_combine(V_ACC, V_R0)
    A('s_mov_b64 exec, 0xff')
    A(f'ds_write_b128 v{V_T2}, {vr(V_R0,4)}'); A(f'ds_write_b128 v{V_T2}, {vr(V_R0+4,4)} offset:16')
    A('s_mov_b64 exec, -1')
    A('s_waitcnt lgkmcnt(0)')
    A('s_barrier')

    g.lab('L_E')
    A(f's_cmp_eq_u32 s{S_EI}, -1'); A('s_cbranch_scc1 L_fin')
    V_TID4 = V_ADDR; V_X = V_ADDR2
    W1F = V_R1; B1F = V_R1 + 10; W2P = V_R1 + 20
    RAW = V_R2
    MM = V_R0
    A(f'v_lshlrev_b32 v{V_TID4}, 2, v0')
    A(f'v_lshlrev_b32 v{V_T0}, 1, v0')
    A(f'global_load_ushort v{V_X}, v{V_T0}, {sp(P_X)}')
    A(f's_cmp_eq_u32 s{S_WAVE}, 8'); A('s_cbranch_scc1 L_E_noconst')
    A(f'v_lshlrev_b32 v{V_T1}, 4, v0')
    A(f'global_load_dwordx4 {vr(RAW,4)}, v{V_T1}, {sp(P_W1)}')
    A(f'global_load_dwordx4 {vr(RAW+4,4)}, v{V_T1}, {sp(P_B1)}')
    A(f'global_load_dwordx4 {vr(W2P,4)}, v{V_T1}, {sp(P_W2)}')
    A(f'v_add_u32 v{V_T0}, 8192, v{V_T0}')
    A(f'global_load_ushort v{RAW+8}, v{V_T0}, {sp(P_W1)}')
    A(f'global_load_ushort v{RAW+9}, v{V_T0}, {sp(P_B1)}')
    A(f'global_load_ushort v{W2P+4}, v{V_T0}, {sp(P_W2)}')
    A('s_waitcnt vmcnt(0)')
    for k in range(4):
        A(f'v_lshlrev_b32 v{W1F+2*k}, 16, v{RAW+k}'); A(f'v_and_b32 v{W1F+2*k+1}, 0xffff0000, v{RAW+k}')
        A(f'v_lshlrev_b32 v{B1F+2*k}, 16, v{RAW+4+k}'); A(f'v_and_b32 v{B1F+2*k+1}, 0xffff0000, v{RAW+4+k}')
    A(f'v_lshlrev_b32 v{W1F+8}, 16, v{RAW+8}'); A(f'v_lshlrev_b32 v{B1F+8}, 16, v{RAW+9}')
    A('s_branch L_E_pollM')
    g.lab('L_E_noconst')
    A(f'v_mov_b32 v{V_T1}, 0')
    A(f'global_load_ushort v{W2P}, v{V_T1}, {sp(P_B2)}')
    g.lab('L_E_pollM')
    for rho in range(3):
        for q in range(4):
            A(f's_mov_b32 s{S_T}, {HM + rho*9216 + q*2304}')
            A(f'buffer_load_dword v{MM+rho*4+q}, v{V_TID4}, {sq(SRD_WS)}, s{S_T} offen sc1')
    A('s_waitcnt vmcnt(0)')
    A(f'v_max3_u32 v{V_T2}, v{MM}, v{MM+1}, v{MM+2}')
    for r in range(3, 11, 2): A(f'v_max3_u32 v{V_T2}, v{V_T2}, v{MM+r}, v{MM+r+1}')
    A(f'v_max_u32 v{V_T2}, v{V_T2}, v{MM+11}')
    A(f'v_cmp_eq_u32 vcc, -1, v{V_T2}')
    A('s_cmp_eq_u64 vcc, 0'); A('s_cbranch_scc1 L_E_okM'); spin_guard('L_E_okM'); A('s_branch L_E_pollM')
    g.lab('L_E_okM')
    stamp(7) if False else None
    for q in range(4): A(f'v_add_f32 v{MM+q}, v{MM+q}, v{MM+4+q}')
    for q in range(4): A(f'v_add_f32 v{MM+q}, v{MM+q}, v{MM+8+q}')
    for q in range(4): rnd(MM+q, MM+q)
    GA, SB, CB, GB = MM, MM+1, MM+2, MM+3
    A(f'v_add_f32 v{CB}, 1.0, v{CB}'); rnd(CB, CB)
    A(f'ds_write_b32 v{V_TID4}, v{GB} offset:{GBV}')
    A(f'v_lshlrev_b32 v{V_X}, 16, v{V_X}')
    A(f'v_mov_b32 v{V_HB}, {hex(f2u(-2.0*0.7978845608028654*0.044715*1.4426950408889634))}')
    PA = V_ACC
    g.lab('L_E_poll3')
    for p in range(14):
        off = H3 + p*2304
        A(f's_mov_b32 s{S_T}, {off}')
        A(f'buffer_load_dword v{PA+p}, v{V_TID4}, {sq(SRD_WS)}, s{S_T} offen sc1')
    A('s_waitcnt vmcnt(0)')
    A(f'v_max3_u32 v{V_T2}, v{PA}, v{PA+1}, v{PA+2}'); A(f'v_max3_u32 v{V_T3}, v{PA+3}, v{PA+4}, v{PA+5}')
    A(f'v_max3_u32 v{V_T2}, v{V_T2}, v{PA+6}, v{PA+7}'); A(f'v_max3_u32 v{V_T3}, v{V_T3}, v{PA+8}, v{PA+9}')
    A(f'v_max3_u32 v{V_T2}, v{V_T2}, v{PA+10}, v{PA+11}'); A(f'v_max3_u32 v{V_T3}, v{V_T3}, v{PA+12}, v{PA+13}')
    A(f'v_max_u32 v{V_T2}, v{V_T2}, v{V_T3}')
    A(f'v_cmp_eq_u32 vcc, -1, v{V_T2}')
    A('s_cmp_eq_u64 vcc, 0'); A('s_cbranch_scc1 L_E_ok3'); spin_guard('L_E_ok3'); A('s_branch L_E_poll3')
    g.lab('L_E_ok3')
    stamp(8)
    for k in range(7): A(f'v_add_f32 v{PA+k}, v{PA+k}, v{PA+7+k}')
    for k in range(3): A(f'v_add_f32 v{PA+k}, v{PA+k}, v{PA+3+k}')
    A(f'v_add_f32 v{PA}, v{PA}, v{PA+6}'); A(f'v_add_f32 v{PA+1}, v{PA+1}, v{PA+2}'); A(f'v_add_f32 v{PA}, v{PA}, v{PA+1}')
    rnd(PA, PA)
    A(f'v_mul_f32 v{PA}, v{PA}, v{GA}'); rnd(PA, PA)
    X1 = PA + 1
    A(f'v_add_f32 v{X1}, v{PA}, v{V_X}'); rnd(X1, X1)
    A(f'ds_write_b32 v{V_TID4}, v{X1} offset:{X1V}')
    def block_stats(val, red, mean_out, rstd_out):
        g.nop(1)
        A(f'v_readfirstlane_b32 s{S_A}, v{val}')
        g.nop(2)
        A(f'v_subrev_f32 v{V_T2}, s{S_A}, v{val}')
        A(f'v_mul_f32 v{V_T3}, v{V_T2}, v{V_T2}')
        wave_sum2(V_T2, V_T3, V_T0, V_T1)
        A(f'v_mul_f32 v{V_T0}, {hex(f2u(1.0/64))}, v{V_T2}')
        A(f'v_fma_f32 v{V_T3}, -v{V_T0}, v{V_T2}, v{V_T3}')
        A(f'v_add_f32 v{V_T2}, s{S_A}, v{V_T0}')
        A(f's_lshl_b32 s{S_B}, s{S_WAVE}, 3')
        A(f'v_mov_b32 v{V_T0}, s{S_B}')
        A('s_mov_b64 exec, 1')
        A(f'ds_write_b64 v{V_T0}, {vr(V_T2,2)} offset:{red}')
        A('s_mov_b64 exec, -1')
        A('s_waitcnt lgkmcnt(0)')
        A('s_barrier')
        A(f'v_and_b32 v{V_T0}, 15, v{V_LANE}')
        A(f'v_cmp_gt_u32 vcc, 9, v{V_T0}')
        A(f'v_lshlrev_b32 v{V_T0}, 3, v{V_T0}')
        A(f'ds_read_b64 {vr(V_T2,2)}, v{V_T0} offset:{red}')
        A(f'v_mov_b32 v{V_T0}, 0')
        A(f'ds_read_b32 v{V_T4}, v{V_T0} offset:{red}')
        A('s_waitcnt lgkmcnt(0)')
        A(f'v_sub_f32 v{V_T2}, v{V_T2}, v{V_T4}')
        A(f'v_cndmask_b32 v{V_T2}, 0, v{V_T2}, vcc')
        A(f'v_cndmask_b32 v{V_T3}, 0, v{V_T3}, vcc')
        A(f'v_mul_f32 v{V_T0}, v{V_T2}, v{V_T2}')
        A(f'v_fmac_f32 v{V_T3}, 0x42800000, v{V_T0}')
        A(f'v_mul_f32 v{V_T2}, 0x42800000, v{V_T2}')
        for sh in (1, 2, 4, 8):
            g.nop(1)
            A(f'v_add_f32_dpp v{V_T2}, v{V_T2}, v{V_T2} row_ror:{sh} row_mask:0xf bank_mask:0xf')
            A(f'v_add_f32_dpp v{V_T3}, v{V_T3}, v{V_T3} row_ror:{sh} row_mask:0xf bank_mask:0xf')
        ln_stats(V_T2, V_T3, False, V_T4, mean_out, rstd_out, V_T0)
    block_stats(X1, RED1, V_T4, V_T5)
    HH = PA + 2
    A(f'v_sub_f32 v{HH}, v{X1}, v{V_T4}'); rnd(HH, HH)
    A(f'v_mul_f32 v{HH}, v{HH}, v{V_T5}'); rnd(HH, HH)
    A(f'v_mul_f32 v{HH}, v{HH}, v{CB}'); rnd(HH, HH)
    A(f'v_add_f32 v{HH}, v{HH}, v{SB}'); rnd(HH, HH)
    A(f'ds_write_b32 v{V_TID4}, v{HH} offset:{HV}')
    block_stats(HH, RED2, V_T4, V_T5)
    A(f's_mul_i32 s{S_A}, s{S_EI}, 12')
    A(f'v_and_b32 v{V_T0}, 3, v{V_LANE}'); A(f'v_min_u32 v{V_T0}, 2, v{V_T0}'); A(f'v_lshl_add_u32 v{V_OPA}, v{V_T0}, 2, s{S_A}')
    A(f'ds_read_b32 v{V_T2}, v{V_OPA} offset:{HV}')
    A('s_waitcnt lgkmcnt(0)')
    A(f'v_sub_f32 v{V_T2}, v{V_T2}, v{V_T4}'); rnd(V_T2, V_T2)
    A(f'v_mul_f32 v{V_T2}, v{V_T2}, v{V_T5}'); rnd(V_T2, V_T2)
    g.nop(1)
    for r in range(3): A(f'v_readlane_b32 s{S_H+r}, v{V_T2}, {r}')
    stamp(9)
    A(f's_cmp_eq_u32 s{S_WAVE}, 8'); A('s_cbranch_scc1 L_E_wait')
    C0 = hex(f2u(-2.0*0.7978845608028654*1.4426950408889634))
    ACCY = V_VEC
    U = V_ACC; Z = V_ACC + 10; G_ = V_ACC + 20
    for r in range(3): A(f'v_mov_b32 v{ACCY+r}, 0')
    for r in range(3):
        n = 9
        for k in range(n): A(f'v_mul_f32 v{U+k}, s{S_H+r}, v{W1F+k}')
        for k in range(n): rnd(U+k, U+k)
        for k in range(n): A(f'v_add_f32 v{U+k}, v{U+k}, v{B1F+k}')
        for k in range(n): rnd(U+k, U+k)
        for k in range(n): A(f'v_mul_f32 v{Z+k}, v{U+k}, v{U+k}')
        for k in range(n): A(f'v_fmaak_f32 v{Z+k}, v{Z+k}, v{V_HB}, {C0}')
        for k in range(n): A(f'v_mul_f32 v{Z+k}, v{Z+k}, v{U+k}')
        for k in range(n): A(f'v_exp_f32 v{Z+k}, v{Z+k}')
        for k in range(n): A(f'v_add_f32 v{Z+k}, 1.0, v{Z+k}')
        for k in range(n): A(f'v_rcp_f32 v{Z+k}, v{Z+k}')
        for k in range(n): A(f'v_mul_f32 v{Z+k}, v{Z+k}, v{U+k}')
        for k in range(4): A(f'v_cvt_pk_bf16_f32 v{G_+k}, v{Z+2*k}, v{Z+2*k+1}')
        A(f'v_cvt_pk_bf16_f32 v{G_+4}, v{Z+8}, 0')
        for k in range(5):
            A(f'v_dot2c_f32_bf16 v{ACCY+r}, v{G_+k}, v{W2P+k}')
    g.nop(3)
    for sh in (1, 2, 4, 8):
        for r in range(3): A(f'v_add_f32_dpp v{ACCY+r}, v{ACCY+r}, v{ACCY+r} row_ror:{sh} row_mask:0xf bank_mask:0xf')
    for sw in ('v_permlane16_swap_b32', 'v_permlane32_swap_b32'):
        for r in range(3): A(f'v_mov_b32 v{ACCY+4+r}, v{ACCY+r}')
        g.nop(1)
        for r in range(3): A(f'{sw} v{ACCY+r}, v{ACCY+4+r}')
        g.nop(1)
        for r in range(3): A(f'v_add_f32 v{ACCY+r}, v{ACCY+r}, v{ACCY+4+r}')
    A(f's_lshl_b32 s{S_B}, s{S_WAVE}, 2'); A(f'v_mov_b32 v{V_T0}, s{S_B}')
    A('s_mov_b64 exec, 1')
    for r in range(3): A(f'ds_write_b32 v{V_T0}, v{ACCY+r} offset:{YRED+32*r}')
    A('s_mov_b64 exec, -1')
    A('s_waitcnt lgkmcnt(0)')
    A('s_barrier')
    A('s_branch L_fin')
    g.lab('L_E_wait')
    A(f'ds_read_b32 v{V_T4}, v{V_OPA} offset:{X1V}')
    A(f'ds_read_b32 v{V_T5}, v{V_OPA} offset:{GBV}')
    A(f'v_and_b32 v{V_T0}, 3, v{V_LANE}'); A(f'v_min_u32 v{V_T0}, 2, v{V_T0}'); A(f'v_lshlrev_b32 v{V_T1}, 5, v{V_T0}')
    A(f'v_lshlrev_b32 v{W2P}, 16, v{W2P}')
    A(f'v_lshrrev_b32 v{V_OPA}, 1, v{V_OPA}')
    A('s_barrier')
    A(f'ds_read_b128 {vr(V_ACC,4)}, v{V_T1} offset:{YRED}'); A(f'ds_read_b128 {vr(V_ACC+4,4)}, v{V_T1} offset:{YRED+16}')
    A('s_waitcnt lgkmcnt(0)')
    for k in range(4): A(f'v_add_f32 v{V_ACC+k}, v{V_ACC+k}, v{V_ACC+4+k}')
    A(f'v_add_f32 v{V_ACC}, v{V_ACC}, v{V_ACC+1}'); A(f'v_add_f32 v{V_ACC+2}, v{V_ACC+2}, v{V_ACC+3}'); A(f'v_add_f32 v{V_ACC}, v{V_ACC}, v{V_ACC+2}')
    rnd(V_ACC, V_ACC)
    A(f'v_add_f32 v{V_ACC}, v{W2P}, v{V_ACC}'); rnd(V_ACC, V_ACC)
    A(f'v_mul_f32 v{V_ACC}, v{V_ACC}, v{V_T5}'); rnd(V_ACC, V_ACC)
    A(f'v_add_f32 v{V_ACC}, v{V_ACC}, v{V_T4}')
    A(f'v_cvt_pk_bf16_f32 v{V_ACC}, v{V_ACC}, v{V_ACC}')
    A('s_mov_b64 exec, 7')
    A(f'global_store_short v{V_OPA}, v{V_ACC}, {sp(P_OUT)}')
    A('s_mov_b64 exec, -1')
    g.lab('L_fin')
    if stamps:
        stamp(10)
        A('s_waitcnt lgkmcnt(0)')
        A(f's_mul_i32 s{S_A}, s2, 9'); A(f's_add_u32 s{S_A}, s{S_A}, s{S_WAVE}'); A(f's_lshl_b32 s{S_A}, s{S_A}, 7'); A(f's_add_u32 s{S_A}, s{S_A}, {STAMP}')
        A(f's_getreg_b32 s{S_B}, hwreg(HW_REG_HW_ID)'); A(f's_getreg_b32 s{S_C}, hwreg(HW_REG_XCC_ID)')
        for k in range(22): A(f'v_mov_b32 v{V_R0+k}, s{S_ST+k}')
        A(f'v_mov_b32 v{V_R0+22}, s{S_B}'); A(f'v_mov_b32 v{V_R0+23}, s{S_C}')
        A(f'v_mov_b32 v{V_T0}, 0')
        A('s_mov_b64 exec, 1')
        for k in range(5): A(f'buffer_store_dwordx4 {vr(V_R0+4*k,4)}, v{V_T0}, {sq(SRD_WS)}, s{S_A} offen offset:{16*k}')
        A(f'buffer_store_dwordx2 {vr(V_R0+20,2)}, v{V_T0}, {sq(SRD_WS)}, s{S_A} offen offset:80')
        A(f'buffer_store_dwordx2 {vr(V_R0+22,2)}, v{V_T0}, {sq(SRD_WS)}, s{S_A} offen offset:120')
    g.lab('L_end')
    A('s_endpgm')
    T = []
    T.append('.section .rodata,"a"'); T.append('.p2align 6'); T.append(f'.amdhsa_kernel {NAME}_kernel')
    T.append(f'  .amdhsa_next_free_vgpr {NVGPR}'); T.append('  .amdhsa_next_free_sgpr 102'); T.append(f'  .amdhsa_accum_offset {NVGPR}')
    T.append('  .amdhsa_group_segment_fixed_size 0'); T.append('  .amdhsa_kernarg_size 120'); T.append('  .amdhsa_user_sgpr_count 2')
    T.append('  .amdhsa_user_sgpr_kernarg_segment_ptr 1'); T.append('  .amdhsa_system_sgpr_workgroup_id_x 1')
    T.append('  .amdhsa_float_denorm_mode_32 3')
    T.append('.end_amdhsa_kernel')
    pre = []
    if stamps:
        pre = [f'    s_mov_b64 s[{S_ST+2*k}:{S_ST+2*k+1}], 0' for k in range(11)]
    return '\n'.join(H + pre + g.L + T) + '\n'

if __name__ == '__main__':
    out = sys.argv[1]
    open(out, 'w').write(build(stamps=('stamps' in sys.argv[2:])))
```

```python
import sys, struct
NAME = 'adaLN_cond__sliding_block_cached__mixer_token_mlp__decode'
def f2u(x): return struct.unpack('<I', struct.pack('<f', x))[0]
def fx(x): return hex(f2u(x))

H0T = 0x00000
H1 = 0x20000
H2O = 0x48000
ML = 0x68000
H3 = 0x6C000
HM = 0x74000
FLC = 0x7C000
FLS = 0x7C400
TB = 0x80000
DUMMY = 0x90000
STAMP = 0x8000000
VEC = 0x0000
SOP = 0x0200
WMAX = 0x0600; WSUM = 0x0640
CNT = 0x0680
OPART = 0x0800
APART = 0x2800
BPART = 0x1000
KLDS = 0x3000
TRED = 0x0000
RED1 = 0x0200; RED2 = 0x02B0
MISS = 0x0360
YRED = 0x03C0
H2V = 0x0400; X1V = 0x0D00; GBV = 0x1600
TBL = 0x2000
LDS_BYTES = 0x13000
SPIN = 1 << 16

S_WAVE, S_ST0, S_IDX = 3, 4, 5
S_E0, S_E1 = 6, 7
S_SC = 8
S_SAVE = 10
P_X, P_K, P_V, P_WQ, P_WO, P_BX, P_W1, P_B1, P_W2, P_B2, P_C, P_WM, P_OUT, P_DBG, P_WS = [16 + 2*i for i in range(15)]
S_K1, S_K2 = 46, 47
SRD_WS, SRD_M, SRD_M2 = 48, 52, 56
S_M = 60
S_T = 64
S_A, S_B, S_C, S_D, S_E, S_F = 65, 66, 67, 68, 69, 70
S_SPIN = 71
S_PLO, S_PHI = 72, 73
S_G, S_KS, S_I, S_GRP, S_L0, S_NT = 74, 75, 76, 77, 78, 79
S_ST = 80

def sp(r): return f's[{r}:{r+1}]'
def sq(r): return f's[{r}:{r+3}]'
def vr(r, n=1): return f'v{r}' if n == 1 else f'v[{r}:{r+n-1}]'

class Gen:
    def __init__(self): self.L = []
    def A(self, s): self.L.append('    ' + s)
    def lab(self, s): self.L.append(s + ':')
    def nop(self, n):
        while n > 0:
            k = min(n, 16); self.A(f's_nop {k-1}'); n -= k

def build(stamps=False, NB=13, EMIN=-10, NE=16, SLEEP=1, SPINV=SPIN, NOT=0, PK=1, GATE=1, ARB2=1, PERMFIRST=0, DSLEEP=1, ETP=2, QSL=0, HTP=2, TGATE=1, RS=14, AFIRST=0, ARAT=1, VH=8):
    g = Gen(); A = g.A
    def stamp(k):
        if stamps:
            assert k < 11
            A(f's_memrealtime s[{S_ST+2*k}:{S_ST+2*k+1}]')
    V_LANE = 1; T0, T1, T2, T3, T4, T5 = 2, 3, 4, 5, 6, 7
    V_HB = 8; V_ADDR = 9; V_ADDR2 = 10; V_L16 = 11; V_L4 = 12; V_OPA = 13; V_EP = 14
    V_VEC = 16; V_ACC = 32; R0 = 64; R1 = 96; V_KA = 24
    NVGPR = 128
    DPP = 'row_mask:0xf bank_mask:0xf'

    def waitk():
        A('s_waitcnt lgkmcnt(0)'); stamp(1)
    def mk_srd(srd, p, n):
        A(f's_mov_b32 s{srd}, s{p}'); A(f's_mov_b32 s{srd+1}, s{p+1}'); A(f's_mov_b32 s{srd+2}, {hex(n)}'); A(f's_mov_b32 s{srd+3}, 0x00020000')
    def srd_ws(): mk_srd(SRD_WS, P_WS, 0x10000000)
    def lane_consts(l16=True, opa=False):
        if l16: A(f'v_lshlrev_b32 v{V_L16}, 4, v{V_LANE}')
        if opa:
            A(f'v_lshrrev_b32 v{T0}, 4, v{V_LANE}'); A(f'v_and_b32 v{T1}, 1, v{V_LANE}')
            A(f'v_lshlrev_b32 v{T0}, 5, v{T0}'); A(f'v_lshl_add_u32 v{V_OPA}, v{T1}, 4, v{T0}')
    def tile_loads_buf(dst, vaddr, srd, stride):
        for t in range(8):
            off = t * stride
            if off < 4096:
                A(f'buffer_load_dwordx4 {vr(dst+4*t,4)}, v{vaddr}, {sq(srd)}, 0 offen offset:{off} nt')
            else:
                A(f's_mov_b32 s{S_T}, {off}')
                A(f'buffer_load_dwordx4 {vr(dst+4*t,4)}, v{vaddr}, {sq(srd)}, s{S_T} offen nt')
    def tile_perm(src, dst, after=None):
        for tp in range(4):
            if after: after(tp)
            for q in range(4):
                a = src + 4*(2*tp) + q; b = src + 4*(2*tp+1) + q
                A(f'v_perm_b32 v{dst+4*(2*q)+tp}, v{b}, v{a}, s{S_PLO}')
                A(f'v_perm_b32 v{dst+4*(2*q+1)+tp}, v{b}, v{a}, s{S_PHI}')
    def tile_mfma(tr, vec, acc):
        for j in (0, 4, 1, 5, 2, 6, 3, 7):
            A(f'v_mfma_f32_16x16x32_bf16 {vr(acc+4*j,4)}, {vr(vec,4)}, {vr(tr+4*j,4)}, 0')
    def hb_combine(acc, out):
        g.nop(2)
        for k in range(4):
            A(f'v_add_f32_dpp v{out+k}, v{acc+4*k+1}, v{acc+4*k} row_ror:8 row_mask:0xf bank_mask:0x3')
            A(f'v_add_f32_dpp v{out+k}, v{acc+4*(4+k)}, v{acc+4*(4+k)+1} row_ror:8 row_mask:0xf bank_mask:0xc')
    def slot_addr(vdst):
        A(f'v_and_b32 v{T0}, 7, v{V_LANE}'); A(f'v_lshlrev_b32 v{T0}, 5, v{T0}')
        A(f'v_bfe_u32 v{T1}, v{V_LANE}, 3, 1'); A(f'v_lshl_add_u32 v{vdst}, v{T1}, 4, v{T0}')
    def hb_lane_off(vdst, stride):
        A(f'v_lshrrev_b32 v{T0}, 3, v{V_LANE}'); A(f'v_mul_u32_u24 v{T0}, {8*stride}, v{T0}')
        A(f'v_and_b32 v{T1}, 7, v{V_LANE}'); A(f'v_lshl_add_u32 v{vdst}, v{T1}, 4, v{T0}')
    def spin(ok):
        A(f's_sub_u32 s{S_SPIN}, s{S_SPIN}, 1'); A(f's_cmp_lt_i32 s{S_SPIN}, 0'); A(f's_cbranch_scc1 {ok}')
    def retry(loop, ok, sleep=SLEEP):
        A('s_cmp_eq_u64 vcc, 0'); A(f's_cbranch_scc1 {ok}')
        spin(ok)
        if sleep: A(f's_sleep {sleep}')
        A(f's_branch {loop}')
    def rnd(d, s): A(f'v_cvt_pk_bf16_f32 v{d}, 0, v{s}')
    def san(r): A(f'v_min_u32 v{r}, 0xfffffffe, v{r}')
    def sent_check(regs, t, t2=None):
        regs = list(regs)
        if t2 is not None and len(regs) >= 8:
            h = len(regs) // 2
            chains = [(t, regs[:h]), (t2, regs[h:])]
        else: chains = [(t, regs)]
        ops = []
        for tt, rs in chains:
            o = [f'v_max3_u32 v{tt}, v{rs[0]}, v{rs[1]}, v{rs[2]}']
            rest = rs[3:]
            while len(rest) >= 2:
                o.append(f'v_max3_u32 v{tt}, v{tt}, v{rest[0]}, v{rest[1]}'); rest = rest[2:]
            if rest: o.append(f'v_max_u32 v{tt}, v{tt}, v{rest[0]}')
            ops.append(o)
        for i in range(max(len(o) for o in ops)):
            for o in ops:
                if i < len(o): A(o[i])
        if len(chains) == 2: A(f'v_max_u32 v{t}, v{t}, v{t2}')
        A(f'v_cmp_eq_u32 vcc, -1, v{t}')
    def tag_check(base, n, t, t2):
        A(f'v_xor_b32 v{t}, s{S_E0}, v{base+2}'); A(f'v_xor_b32 v{t2}, s{S_E1}, v{base+3}')
        for r in range(1, n):
            A(f'v_bitop3_b32 v{t}, v{t}, v{base+4*r+2}, s{S_E0} bitop3:0xf6'); A(f'v_bitop3_b32 v{t2}, v{t2}, v{base+4*r+3}, s{S_E1} bitop3:0xf6')
        A(f'v_or_b32 v{t}, v{t}, v{t2}'); A(f'v_cmp_ne_u32 vcc, 0, v{t}')
    def epoch_load(v=V_EP):
        A(f'v_mov_b32 v{T0}, 0')
        A(f'global_load_dwordx2 {vr(v,2)}, v{T0}, {sp(P_DBG)} sc1')
    def epoch_take(name, v=V_EP, sleep=0):
        g.lab(f'L_{name}_ep')
        A(f'v_readfirstlane_b32 s{S_E1}, v{v+1}'); A(f'v_readfirstlane_b32 s{S_E0}, v{v}')
        A(f's_cmp_lg_u32 s{S_E1}, 0'); A(f's_cbranch_scc1 L_{name}_epok')
        spin(f'L_{name}_epok')
        if sleep: A(f's_sleep {sleep}')
        epoch_load(v)
        A('s_waitcnt vmcnt(0)')
        A(f's_branch L_{name}_ep')
        g.lab(f'L_{name}_epok')
    def dpp_sum16(regs):
        regs = list(regs)
        for sh in (1, 2, 4, 8):
            if len(regs) < 3: g.nop(3 - len(regs))
            for r in regs: A(f'v_add_f32_dpp v{r}, v{r}, v{r} row_ror:{sh} {DPP}')
    def wave_sum2(a, b, t0, t1):
        dpp_sum16([a, b])
        for sw in ('v_permlane16_swap_b32', 'v_permlane32_swap_b32'):
            A(f'v_mov_b32 v{t0}, v{a}'); A(f'v_mov_b32 v{t1}, v{b}'); g.nop(1)
            A(f'{sw} v{a}, v{t0}'); A(f'{sw} v{b}, v{t1}'); g.nop(1)
            A(f'v_add_f32 v{a}, v{a}, v{t0}'); A(f'v_add_f32 v{b}, v{b}, v{t1}')
    def ln_stats(s1, s2, kreg, mean_out, rstd_out):
        A(f'v_mul_f32 v{s1}, {fx(1.0/576)}, v{s1}'); A(f'v_mul_f32 v{s2}, {fx(1.0/576)}, v{s2}')
        A(f'v_fma_f32 v{s2}, -v{s1}, v{s1}, v{s2}'); A(f'v_add_f32 v{mean_out}, {kreg}, v{s1}')
        A(f'v_max_f32 v{s2}, 0, v{s2}')
        rnd(s2, s2); rnd(mean_out, mean_out)
        A(f'v_add_f32 v{s2}, {fx(1e-5)}, v{s2}'); rnd(s2, s2)
        A(f'v_sqrt_f32 v{s2}, v{s2}'); g.nop(1); rnd(s2, s2)
        A(f'v_rcp_f32 v{rstd_out}, v{s2}'); g.nop(1)
    def silu_operand(vdst, vc):
        A(f'v_lshlrev_b32 v{vc}, 16, v{vc}')
        A(f'v_mul_f32 v{T0}, {fx(-1.4426950408889634)}, v{vc}')
        A(f'v_exp_f32 v{T0}, v{T0}'); g.nop(1)
        A(f'v_add_f32 v{T0}, 1.0, v{T0}'); A(f'v_rcp_f32 v{T0}, v{T0}'); g.nop(1)
        A(f'v_mul_f32 v{T0}, v{vc}, v{T0}')
        A(f'v_cvt_pk_bf16_f32 v{T0}, v{T0}, v{T0}')
        A(f's_lshl_b32 s{S_A}, s{S_WAVE}, 7'); A(f's_add_u32 s{S_A}, s{S_A}, {SOP}')
        A(f'v_lshl_add_u32 v{T1}, v{V_LANE}, 1, s{S_A}')
        A(f'ds_write_b16 v{T1}, v{T0}')
        A(f'v_add_u32 v{T1}, s{S_A}, v{V_OPA}')
        A(f'ds_read_b128 {vr(vdst,4)}, v{T1}')
    def c_params():
        A(f's_mul_i32 s{S_GRP}, s{S_IDX}, 7282'); A(f's_lshr_b32 s{S_GRP}, s{S_GRP}, 16')
        A(f's_mul_i32 s{S_A}, s{S_GRP}, 9'); A(f's_sub_u32 s{S_I}, s{S_IDX}, s{S_A}')
        A(f's_mul_i32 s{S_A}, s{S_GRP}, 5'); A(f's_lshl_b32 s{S_B}, s{S_GRP}, 2'); A(f's_add_u32 s{S_B}, s{S_B}, 8')
        A(f's_cmp_lt_u32 s{S_GRP}, 8'); A(f's_cselect_b32 s{S_L0}, s{S_A}, s{S_B}'); A(f's_cselect_b32 s{S_NT}, 5, 4')
        A(f's_cmp_lt_u32 s{S_GRP}, 14'); A(f's_cselect_b32 s{S_NT}, s{S_NT}, 0')
    def h1_slot(dst, s_lam):
        A(f's_lshr_b32 s{dst}, s{s_lam}, 2'); A(f's_mul_i32 s{dst}, s{dst}, 9'); A(f's_add_u32 s{dst}, s{dst}, s{S_I}')
        A(f's_lshl_b32 s{dst}, s{dst}, 10'); A(f's_and_b32 s{S_T}, s{s_lam}, 3'); A(f's_lshl_b32 s{S_T}, s{S_T}, 8')
        A(f's_add_u32 s{dst}, s{dst}, s{S_T}'); A(f's_add_u32 s{dst}, s{dst}, {H1}')
    def h3_slot(dst):
        A(f's_mul_i32 s{dst}, s{S_GRP}, 2304'); A(f's_lshl_b32 s{S_T}, s{S_I}, 8'); A(f's_add_u32 s{dst}, s{dst}, s{S_T}'); A(f's_add_u32 s{dst}, s{dst}, {H3}')
    def ar_params(s_rho, s_lcr):
        A(f's_mul_i32 s{s_rho}, s{S_IDX}, 1821'); A(f's_lshr_b32 s{s_rho}, s{s_rho}, 16')
        A(f's_mul_i32 s{s_lcr}, s{s_rho}, 36'); A(f's_sub_u32 s{s_lcr}, s{S_IDX}, s{s_lcr}')
    def hm_slot(dst, s_rho, s_lcr):
        A(f's_mul_i32 s{dst}, s{s_rho}, 9216'); A(f's_lshl_b32 s{S_T}, s{s_lcr}, 8'); A(f's_add_u32 s{dst}, s{dst}, s{S_T}'); A(f's_add_u32 s{dst}, s{dst}, {HM}')
    def last_arriver(cnt_off, n_expr, out_label):
        A(f'v_mov_b32 v{T0}, {CNT+cnt_off}'); A(f'v_mov_b32 v{T1}, 1')
        A('s_mov_b64 exec, 1')
        A(f'ds_add_rtn_u32 v{T1}, v{T0}, v{T1}')
        A('s_mov_b64 exec, -1')
        A('s_waitcnt lgkmcnt(0)')
        A(f'v_readfirstlane_b32 s{S_T}, v{T1}')
        A(f's_add_u32 s{S_T}, s{S_T}, 1')
        A(f's_cmp_eq_u32 s{S_T}, {n_expr}'); A(f's_cbranch_scc0 {out_label}')
    def store16(data, vaddr, soff, mask='0xffff', off=0):
        A(f's_mov_b64 exec, {mask}')
        A(f'buffer_store_dwordx4 {vr(data,4)}, v{vaddr}, {sq(SRD_WS)}, s{soff} offen offset:{off} sc1')
        A('s_mov_b64 exec, -1')

    H = [f'; @launch grid=(512,1,1) block=(512,1,1) lds={LDS_BYTES}', '.amdgcn_target "amdgcn-amd-amdhsa--gfx950"', '.text',
         f'.globl {NAME}_kernel', '.p2align 8', f'.type {NAME}_kernel,@function', f'{NAME}_kernel:']
    stamp(0)
    A('s_cmp_ge_u32 s2, 512'); A('s_cbranch_scc1 L_end')
    A('s_load_dwordx16 s[16:31], s[0:1], 0')
    A('s_load_dwordx8 s[32:39], s[0:1], 64')
    A('s_load_dwordx4 s[40:43], s[0:1], 96')
    A('s_load_dwordx2 s[44:45], s[0:1], 112')
    A(f'v_lshrrev_b32 v{T0}, 6, v0')
    A(f'v_and_b32 v{V_LANE}, 63, v0')
    A(f'v_readfirstlane_b32 s{S_WAVE}, v{T0}')
    A(f's_mov_b32 s{S_SPIN}, {SPINV}')
    A(f's_cmp_lt_u32 s2, 16'); A(f's_cselect_b32 s{S_A}, s{S_WAVE}, 0'); A(f's_cmp_lt_u32 s{S_A}, 5'); A('s_cbranch_scc1 L_nopf')
    A(f's_getpc_b64 {sp(S_M)}')
    g.lab('L_pc')
    A(f's_sub_u32 s{S_A}, s{S_A}, 5'); A(f's_lshl_b32 s{S_A}, s{S_A}, 13')
    A(f'v_lshl_add_u32 v{T2}, v{V_LANE}, 7, s{S_A}')
    A(f'v_min_u32 v{T2}, L_codeend-L_pc-4, v{T2}')
    A(f'global_load_dword v{R1+31}, v{T2}, {sp(S_M)}')
    g.lab('L_nopf')
    A('s_cmp_ge_u32 s2, 256'); A('s_cbranch_scc1 L_end' if NOT else 's_cbranch_scc1 L_T')
    A('s_setprio 2')
    A(f's_lshr_b32 s{S_IDX}, s2, 4'); A(f's_lshl_b32 s{S_IDX}, s{S_IDX}, 3'); A(f's_and_b32 s{S_A}, s2, 7'); A(f's_or_b32 s{S_IDX}, s{S_IDX}, s{S_A}')
    A(f's_mov_b32 s{S_PLO}, 0x05040100'); A(f's_mov_b32 s{S_PHI}, 0x07060302')
    A('s_bitcmp1_b32 s2, 3'); A('s_cbranch_scc1 L_S')
    A(f's_cmp_ge_u32 s{S_WAVE}, 4'); A('s_cbranch_scc1 L_CB')
    A(f's_cmp_eq_u32 s{S_WAVE}, 0'); A('s_cbranch_scc0 L_CA')
    A(f's_cmp_lt_u32 s2, 8'); A('s_cbranch_scc0 L_CB')
    A(f's_memrealtime {sp(S_M+2)}')
    A(f'v_mov_b32 v{V_VEC+2}, 0'); A(f'v_mov_b32 v{V_VEC+3}, 0')
    A('s_waitcnt lgkmcnt(0)')
    A(f's_or_b32 s{S_M+3}, s{S_M+3}, 0x80000000')
    A(f'v_mov_b32 v{V_VEC}, s{S_M+2}'); A(f'v_mov_b32 v{V_VEC+1}, s{S_M+3}')
    A('s_mov_b64 exec, 1')
    A(f'global_atomic_cmpswap_x2 v{V_VEC+2}, {vr(V_VEC,4)}, {sp(P_DBG)} sc1')
    A('s_mov_b64 exec, -1')
    A('s_branch L_CB')

    g.lab('L_CA')
    A(f's_sub_u32 s{S_F}, s{S_WAVE}, 1')
    A(f's_lshr_b32 s{S_A}, s{S_IDX}, 3'); A(f's_lshl_b32 s{S_A}, s{S_A}, 2'); A(f's_and_b32 s{S_B}, s{S_IDX}, 3'); A(f's_or_b32 s{S_A}, s{S_A}, s{S_B}')
    A(f's_bitcmp1_b32 s{S_IDX}, 2'); A(f's_cselect_b32 s{S_G}, 64, s{S_A}')
    A(f's_mul_i32 s{S_C}, s{S_G}, 3641'); A(f's_lshr_b32 s{S_C}, s{S_C}, 16')
    A(f's_mul_i32 s{S_A}, s{S_C}, 18'); A(f's_sub_u32 s{S_D}, s{S_G}, s{S_A}')
    hb_lane_off(V_ADDR, 6912)
    lane_consts(l16=True, opa=True)
    slot_addr(V_ADDR2)
    A(f's_lshl_b32 s{S_B}, s{S_F}, 8'); A(f's_add_u32 s{S_B}, s{S_B}, {APART}'); A(f'v_add_u32 v{V_ADDR2}, s{S_B}, v{V_ADDR2}')
    waitk()
    mk_srd(SRD_M, P_WM, 576*3456*2)
    def a_task(name, crit):
        A(f's_mul_i32 s{S_E}, s{S_C}, 3'); A(f's_add_u32 s{S_E}, s{S_E}, s{S_F}')
        A(f's_lshl_b32 s{S_A}, s{S_E}, 7')
        A(f'v_lshl_add_u32 v{T2}, v{V_LANE}, 1, s{S_A}')
        A(f'global_load_ushort v{T5}, v{T2}, {sp(P_C)}')
        A(f's_mul_i32 s{S_A}, s{S_E}, {64*6912}'); A(f's_lshl_b32 s{S_B}, s{S_D}, 7'); A(f's_add_u32 s{S_A}, s{S_A}, s{S_B}')
        A(f'v_add_u32 v{T2}, s{S_A}, v{V_ADDR}')
        tile_loads_buf(R0, T2, SRD_M, 6912)
        ex = 0
        if crit:
            srd_ws()
            A('s_barrier')
            A(f's_mul_i32 s{S_M}, s{S_D}, 3'); A(f's_add_u32 s{S_M}, s{S_M}, s{S_C}'); A(f's_lshl_b32 s{S_M}, s{S_M}, 9')
        A('s_waitcnt vmcnt(8)')
        silu_operand(V_VEC, T5)
        def aw(tp):
            A(f's_waitcnt vmcnt({6-2*tp})')
            if crit and tp == ETP:
                A('s_waitcnt lgkmcnt(0)')
                A(f's_load_dwordx2 {sp(S_E0)}, {sp(P_DBG)}, 0')
        tile_perm(R0, R1, after=aw)
        if not crit or ETP > 3: A('s_waitcnt lgkmcnt(0)')
        stamp(7 if crit else 5)
        tile_mfma(R1, V_VEC, V_ACC)
        hb_combine(V_ACC, V_VEC+4)
        A('s_mov_b64 exec, 0xffff')
        A(f'ds_write_b128 v{V_ADDR2}, {vr(V_VEC+4,4)} offset:{0 if crit else 768}')
        A('s_mov_b64 exec, -1')
        last_arriver(4 if crit else 8, 3, f'L_{name}_done')
        if crit:
            A(f'v_lshlrev_b32 v{T2}, 3, v{V_LANE}')
            for w in range(3): A(f'ds_read_b64 {vr(R0+4*w,2)}, v{T2} offset:{APART+256*w}')
            A(f's_cmp_lg_u32 s{S_E1}, 0'); A(f's_cbranch_scc1 L_{name}_epok')
            epoch_load()
            A('s_waitcnt vmcnt(0)')
            epoch_take(name)
            stamp(8)
            A('s_waitcnt lgkmcnt(0)')
            A(f'v_pk_add_f32 {vr(R0,2)}, {vr(R0,2)}, {vr(R0+4,2)}'); A(f'v_pk_add_f32 {vr(R0,2)}, {vr(R0,2)}, {vr(R0+8,2)}')
            A(f'v_mov_b32 v{R0+2}, s{S_E0}'); A(f'v_mov_b32 v{R0+3}, s{S_E1}')
            A('s_mov_b32 exec_hi, 0')
            A(f'buffer_store_dwordx4 {vr(R0,4)}, v{V_L16}, {sq(SRD_WS)}, s{S_M} offen sc1')
            A('s_mov_b64 exec, -1')
            stamp(2)
        else:
            for w in range(3): A(f'ds_read_b128 {vr(R0+4*w,4)}, v{V_L16} offset:{APART+768+256*w}')
            A('s_waitcnt lgkmcnt(0)')
            for k in (0, 2): A(f'v_pk_add_f32 {vr(R0+k,2)}, {vr(R0+k,2)}, {vr(R0+4+k,2)}')
            for k in (0, 2): A(f'v_pk_add_f32 {vr(R0+k,2)}, {vr(R0+k,2)}, {vr(R0+8+k,2)}')
            for k in range(4): san(R0+k)
            store16(R0, V_L16, S_M+1)
            stamp(6)
    A(f's_cmp_lt_u32 s{S_G}, 54'); A('s_cbranch_scc0 L_CAc_none')
    a_task('CAc', True)
    g.lab('L_CAc_done')
    if AFIRST: A('s_barrier')
    A('s_branch L_CAc_done2')
    g.lab('L_CAc_none')
    A('s_barrier')
    g.lab('L_CAc_done2')
    srd_ws()
    ar_params(S_C, S_D)
    hm_slot(S_M+1, S_C, S_D)
    A(f's_add_u32 s{S_D}, s{S_D}, 18')
    A(f's_cmp_eq_u32 s{S_IDX}, 127'); A('s_cbranch_scc1 L_E0')
    A(f's_cmp_eq_u32 s{S_WAVE}, 1'); A('s_cbranch_scc0 L_CA_b2')
    c_params(); h3_slot(S_M+3)
    for k in range(4): A(f'v_mov_b32 v{V_ACC+k}, -1')
    A(f's_lshl_b32 s{S_A}, s{S_IDX}, 8'); A(f's_add_u32 s{S_A}, s{S_A}, {DUMMY}')
    A('s_mov_b64 exec, 0xffff')
    A(f's_cmp_gt_u32 s{S_NT}, 0'); A(f's_cselect_b32 s{S_B}, s{S_M+3}, s{S_A}')
    A(f'buffer_store_dwordx4 {vr(V_ACC,4)}, v{V_L16}, {sq(SRD_WS)}, s{S_B} offen sc1')
    A(f's_cmp_lt_u32 s{S_IDX}, 108'); A(f's_cselect_b32 s{S_B}, s{S_M+1}, s{S_A}')
    A(f'buffer_store_dwordx4 {vr(V_ACC,4)}, v{V_L16}, {sq(SRD_WS)}, s{S_B} offen sc1')
    A('s_mov_b64 exec, -1')
    epoch_load()
    A(f's_lshl_b32 s{S_M+2}, s{S_IDX}, 3'); A(f's_add_u32 s{S_M+2}, s{S_M+2}, {FLC}')
    A('s_waitcnt vmcnt(0)')
    epoch_take('CA1', sleep=2)
    A('s_mov_b64 exec, 1')
    A(f'buffer_store_dwordx2 {vr(V_EP,2)}, v{V_L16}, {sq(SRD_WS)}, s{S_M+2} offen sc1')
    A('s_mov_b64 exec, -1')
    g.lab('L_CA_b2')
    A('s_barrier')
    if ARAT == 2: A('s_barrier')
    A(f's_cmp_lt_u32 s{S_IDX}, 108'); A('s_cbranch_scc0 L_fin')
    a_task('fin', False)
    A('s_branch L_fin')

    g.lab('L_CB')
    c_params()
    A(f's_add_u32 s{S_E}, s{S_WAVE}, 4'); A(f's_and_b32 s{S_E}, s{S_E}, 7')
    A(f's_add_u32 s{S_F}, s{S_L0}, s{S_E}')
    A(f's_bfe_u32 s{S_G}, s{S_IDX}, 0x10002'); A(f's_xor_b32 s{S_G}, s{S_G}, 1'); A(f's_sub_u32 s{S_KS}, 5, s{S_G}')
    A(f's_lshl_b32 s{S_K1}, s{S_G}, 11')
    A(f's_mul_i32 s{S_G}, s{S_G}, 5'); A(f's_add_u32 s{S_G}, s{S_G}, s{S_E}')
    hb_lane_off(V_ADDR, 8192)
    A(f's_lshl_b32 s{S_A}, s{S_G}, 19'); A(f's_lshr_b32 s{S_B}, s{S_IDX}, 3'); A(f's_lshl_b32 s{S_B}, s{S_B}, 9'); A(f's_add_u32 s{S_A}, s{S_A}, s{S_B}')
    A(f's_and_b32 s{S_B}, s{S_IDX}, 3'); A(f's_lshl_b32 s{S_B}, s{S_B}, 7'); A(f's_add_u32 s{S_A}, s{S_A}, s{S_B}')
    A(f'v_add_u32 v{V_ADDR}, s{S_A}, v{V_ADDR}')
    lane_consts(l16=True, opa=True)
    XR = V_ACC
    A(f'v_and_b32 v{T0}, 31, v{V_LANE}'); A(f'v_lshlrev_b32 v{V_HB}, 2, v{T0}')
    A(f's_lshl_b32 s{S_A}, s{S_G}, 7'); A(f'v_add_u32 v{T3}, s{S_A}, v{V_HB}')
    A(f's_cmp_eq_u32 s{S_WAVE}, 0'); A('s_cbranch_scc0 L_CB_b0')
    A(f'v_mov_b32 v{T4}, 0'); A(f'v_mov_b32 v{T5}, 0'); A(f'v_mov_b32 v{T2}, {CNT}')
    A(f'ds_write_b64 v{T2}, {vr(T4,2)}'); A(f'ds_write_b64 v{T2}, {vr(T4,2)} offset:8')
    A(f'v_lshlrev_b32 v{T2}, 2, v{V_LANE}'); A(f'ds_write_b32 v{T2}, v{T4} offset:{OPART+1024}'); A(f'ds_write_b32 v{T2}, v{T4} offset:{BPART+1024}')
    g.lab('L_CB_b0')
    waitk()
    A('s_barrier')
    if AFIRST:
        A(f's_lshr_b32 s{S_A}, s{S_IDX}, 3'); A(f's_lshl_b32 s{S_A}, s{S_A}, 2'); A(f's_and_b32 s{S_B}, s{S_IDX}, 3'); A(f's_or_b32 s{S_A}, s{S_A}, s{S_B}')
        A(f's_bitcmp1_b32 s{S_IDX}, 2'); A(f's_cselect_b32 s{S_A}, 64, s{S_A}')
        A(f's_cmp_lt_u32 s{S_A}, 54'); A('s_cbranch_scc0 L_CB_noA')
        A('s_barrier')
        g.lab('L_CB_noA')
    A(f's_cmp_lt_u32 s{S_E}, s{S_KS}'); A('s_cbranch_scc0 L_CB_noB')
    mk_srd(SRD_M, P_WQ, 576*4096*2)
    tile_loads_buf(R0, V_ADDR, SRD_M, 8192)
    epoch_load()
    A(f'global_load_dwordx4 {vr(XR+12,4)}, v{V_L16}, {sp(P_X)}')
    A(f'global_load_dword v{XR+8}, v{V_HB}, {sp(P_X)} offset:1024')
    A(f'global_load_dword v{XR+10}, v{T3}, {sp(P_X)}')
    g.lab('L_CB_noB')
    stamp(2)
    srd_ws()
    def bd_setup():
        mk_srd(SRD_M2, P_WO, 4096*576*2)
        hb_lane_off(V_ADDR2, 1152)
        A(f's_mul_i32 s{S_A}, s{S_F}, {64*1152}'); A(f's_lshl_b32 s{S_B}, s{S_I}, 7'); A(f's_add_u32 s{S_A}, s{S_A}, s{S_B}')
        A(f'v_add_u32 v{V_ADDR2}, s{S_A}, v{V_ADDR2}')
        slot_addr(V_L4)
        A(f's_lshl_b32 s{S_B}, s{S_E}, 8'); A(f'v_add_u32 v{V_L4}, s{S_B}, v{V_L4}')
        A(f'v_bfe_u32 v{T0}, v{V_LANE}, 1, 3')
        A(f'v_lshlrev_b32 v{V_VEC+14}, 3, v{T0}')
        A(f'v_lshlrev_b32 v{V_VEC+15}, 7, v{T0}')
        A(f'v_lshlrev_b32 v{T0}, 9, v{T0}')
        A(f'v_lshl_add_u32 v{V_ADDR}, v{V_OPA}, 1, v{T0}')
        A(f's_lshr_b32 s{S_A}, s{S_F}, 1'); A(f's_lshr_b32 s{S_B}, s{S_F}, 2')
        A(f's_lshl_b32 s{S_M}, s{S_B}, 6'); A(f's_add_u32 s{S_M}, s{S_M}, {FLS}')
        A(f's_lshl_b32 s{S_B}, s{S_B}, 10'); A(f's_and_b32 s{S_D}, s{S_A}, 1'); A(f's_lshl_b32 s{S_D}, s{S_D}, 3'); A(f's_add_u32 s{S_B}, s{S_B}, s{S_D}'); A(f's_add_u32 s{S_M+1}, s{S_B}, {ML}')
        A(f's_lshl_b32 s{S_A}, s{S_A}, 12'); A(f's_and_b32 s{S_D}, s{S_F}, 1'); A(f's_lshl_b32 s{S_D}, s{S_D}, 8'); A(f's_add_u32 s{S_A}, s{S_A}, s{S_D}'); A(f's_add_u32 s{S_M+2}, s{S_A}, {H2O}')
        h3_slot(S_M+3)
    bd_setup()
    A(f's_lshr_b32 s{S_A}, s{S_IDX}, 3'); A(f's_lshl_b32 s{S_A}, s{S_A}, 12'); A(f's_add_u32 s{S_A}, s{S_A}, s{S_K1}')
    A(f's_and_b32 s{S_B}, s{S_IDX}, 3'); A(f's_lshl_b32 s{S_B}, s{S_B}, 9'); A(f's_add_u32 s{S_A}, s{S_A}, s{S_B}'); A(f's_add_u32 s{S_C}, s{S_A}, {H1}')
    A(f's_cmp_lt_u32 s{S_E}, s{S_KS}'); A('s_cbranch_scc0 L_CB_noB2')
    P0 = V_ACC + 16
    A(f'v_lshrrev_b32 v{T1}, 5, v{V_LANE}'); A(f'v_mul_u32_u24 v{T1}, {9*3*512}, v{T1}'); A(f'v_lshl_add_u32 v{V_VEC+12}, v{V_HB}, 2, v{T1}')
    A(f's_mul_i32 s{S_K2}, s{S_G}, {3*512}')
    A(f's_lshl_b32 s{S_A}, s{S_WAVE}, 7'); A(f's_add_u32 s{S_A}, s{S_A}, {SOP}')
    A(f'v_add_u32 v{V_HB}, s{S_A}, v{V_HB}'); A(f'v_add_u32 v{V_VEC+13}, s{S_A}, v{V_OPA}')
    def h0_loads():
        for r in range(3): A(f'buffer_load_dwordx4 {vr(P0+4*r,4)}, v{V_VEC+12}, {sq(SRD_WS)}, s{S_K2} offen offset:{512*r} sc1')
    def bw(tp):
        A(f's_waitcnt vmcnt({10-2*tp+(3 if tp > HTP else 0)})')
        if tp == HTP: h0_loads()
    tile_perm(R0, R1, after=bw)
    A('s_waitcnt vmcnt(3)')
    stamp(3)
    epoch_take('CB')
    for k in range(4):
        A(f'v_lshlrev_b32 v{XR+2*k}, 16, v{XR+12+k}'); A(f'v_and_b32 v{XR+2*k+1}, 0xffff0000, v{XR+12+k}')
    A(f'v_readfirstlane_b32 s{S_K1}, v{XR}')
    A(f'v_and_b32 v{XR+9}, 0xffff0000, v{XR+8}'); A(f'v_lshlrev_b32 v{XR+8}, 16, v{XR+8}')
    A(f'v_and_b32 v{XR+11}, 0xffff0000, v{XR+10}'); A(f'v_lshlrev_b32 v{XR+10}, 16, v{XR+10}')
    for k in range(10): A(f'v_subrev_f32 v{XR+k}, s{S_K1}, v{XR+k}')
    A('s_mov_b32 exec_lo, 0'); A(f'v_mov_b32 v{XR+8}, 0'); A(f'v_mov_b32 v{XR+9}, 0'); A('s_mov_b32 exec_lo, -1')
    A(f'v_mov_b32 v{T2}, v{XR}'); A(f'v_mul_f32 v{T3}, v{XR}, v{XR}')
    for k in range(1, 10):
        A(f'v_add_f32 v{T2}, v{T2}, v{XR+k}'); A(f'v_fmac_f32 v{T3}, v{XR+k}, v{XR+k}')
    wave_sum2(T2, T3, T0, T1)
    ln_stats(T2, T3, f's{S_K1}', T4, T5)
    for k in (10, 11): A(f'v_sub_f32 v{XR+k}, v{XR+k}, v{T4}')
    for k in (10, 11): rnd(XR+k, XR+k)
    for k in (10, 11): A(f'v_mul_f32 v{XR+k}, v{XR+k}, v{T5}')
    for k in (10, 11): rnd(XR+k, XR+k)
    A(f'v_mov_b32 v{V_VEC+10}, s{S_E0}'); A(f'v_mov_b32 v{V_VEC+11}, s{S_E1}')
    g.lab('L_CB_p0')
    A('s_waitcnt vmcnt(0)')
    tag_check(P0, 3, T2, T3)
    A('s_cmp_eq_u64 vcc, 0'); A('s_cbranch_scc1 L_CB_ok0')
    spin('L_CB_ok0')
    if SLEEP: A(f's_sleep {SLEEP}')
    h0_loads()
    A('s_branch L_CB_p0')
    g.lab('L_CB_ok0')
    stamp(9)
    A(f'v_pk_add_f32 {vr(P0,2)}, {vr(P0,2)}, {vr(P0+4,2)}'); A(f'v_pk_add_f32 {vr(P0,2)}, {vr(P0,2)}, {vr(P0+8,2)}')
    rnd(P0, P0); rnd(P0+1, P0+1)
    A(f'v_mov_b32 v{P0+4}, v{P0}'); A(f'v_mov_b32 v{P0+5}, v{P0+1}'); g.nop(1)
    A(f'v_permlane32_swap_b32 v{P0}, v{P0+4}'); A(f'v_permlane32_swap_b32 v{P0+1}, v{P0+5}')
    g.nop(1)
    A(f'v_add_f32 v{P0+4}, 1.0, v{P0+4}'); A(f'v_add_f32 v{P0+5}, 1.0, v{P0+5}')
    rnd(P0+4, P0+4); rnd(P0+5, P0+5)
    A(f'v_mul_f32 v{P0+4}, v{P0+4}, v{XR+10}'); A(f'v_mul_f32 v{P0+5}, v{P0+5}, v{XR+11}')
    rnd(P0+4, P0+4); rnd(P0+5, P0+5)
    A(f'v_add_f32 v{P0+4}, v{P0+4}, v{P0}'); A(f'v_add_f32 v{P0+5}, v{P0+5}, v{P0+1}')
    A(f'v_cvt_pk_bf16_f32 v{T2}, v{P0+4}, v{P0+5}')
    A(f'ds_write_b32 v{V_HB}, v{T2}')
    A(f'ds_read_b128 {vr(V_VEC,4)}, v{V_VEC+13}')
    A(f'v_lshlrev_b32 v{T2}, 3, v{V_LANE}')
    A('s_waitcnt lgkmcnt(0)')
    tile_mfma(R1, V_VEC, V_ACC)
    hb_combine(V_ACC, V_VEC+4)
    A('s_mov_b64 exec, 0xffff')
    A(f'ds_write_b128 v{V_L4}, {vr(V_VEC+4,4)} offset:{BPART}')
    A('s_mov_b64 exec, -1')
    last_arriver(12, f's{S_KS}', 'L_CB_D')
    for w in range(5): A(f'ds_read_b64 {vr(V_ACC+2*w,2)}, v{T2} offset:{BPART+256*w}')
    A('s_waitcnt lgkmcnt(0)')
    A(f'v_pk_add_f32 {vr(V_ACC,2)}, {vr(V_ACC,2)}, {vr(V_ACC+2,2)}'); A(f'v_pk_add_f32 {vr(V_ACC+4,2)}, {vr(V_ACC+4,2)}, {vr(V_ACC+6,2)}')
    A(f'v_pk_add_f32 {vr(V_ACC,2)}, {vr(V_ACC,2)}, {vr(V_ACC+8,2)}')
    A(f'v_pk_add_f32 {vr(V_VEC+8,2)}, {vr(V_ACC,2)}, {vr(V_ACC+4,2)}')
    A('s_mov_b32 exec_hi, 0')
    A(f'buffer_store_dwordx4 {vr(V_VEC+8,4)}, v{V_L16}, {sq(SRD_WS)}, s{S_C} offen sc1')
    A('s_mov_b64 exec, -1')
    stamp(4)
    A('s_branch L_CB_D')
    g.lab('L_CB_noB2')
    epoch_load()
    A('s_waitcnt vmcnt(0)')
    epoch_take('CB2', sleep=2)
    g.lab('L_CB_D')
    A(f's_cmp_eq_u32 s{S_IDX}, 127'); A('s_cbranch_scc1 L_E0b')
    A('s_barrier')
    A(f's_cmp_lt_u32 s{S_E}, s{S_NT}'); A('s_cbranch_scc0 L_CB_idle')
    tile_loads_buf(R0, V_ADDR2, SRD_M2, 1152)
    FLV = V_VEC + 2
    A(f'buffer_load_dwordx2 {vr(FLV,2)}, v{V_VEC+14}, {sq(SRD_WS)}, s{S_M} offen sc1')
    tile_perm(R0, R1, after=lambda tp: A(f's_waitcnt vmcnt({7-2*tp})'))
    A('s_waitcnt vmcnt(0)')
    if ARAT == 2: A('s_barrier')
    stamp(5)
    g.lab('L_CB_fl')
    A(f'v_cmp_ne_u64 vcc, {sp(S_E0)}, {vr(FLV,2)}')
    A('s_cmp_eq_u64 vcc, 0'); A('s_cbranch_scc1 L_CB_ml')
    spin('L_CB_ml')
    A('s_sleep 2')
    A(f'buffer_load_dwordx2 {vr(FLV,2)}, v{V_VEC+14}, {sq(SRD_WS)}, s{S_M} offen sc1')
    A('s_waitcnt vmcnt(0)')
    A('s_branch L_CB_fl')
    g.lab('L_CB_ml')
    OO = R0
    g.lab('L_CB_poll')
    A(f'buffer_load_dwordx2 {vr(OO+8,2)}, v{V_VEC+15}, {sq(SRD_WS)}, s{S_M+1} offen sc1')
    A(f'buffer_load_dwordx4 {vr(OO,4)}, v{V_ADDR}, {sq(SRD_WS)}, s{S_M+2} offen sc1')
    A(f'buffer_load_dwordx4 {vr(OO+4,4)}, v{V_ADDR}, {sq(SRD_WS)}, s{S_M+2} offen offset:16 sc1')
    A('s_waitcnt vmcnt(0)')
    A(f'v_max_f32_dpp v{T4}, v{OO+8}, v{OO+8} row_ror:2 {DPP}')
    A(f'v_max3_u32 v{T2}, v{OO}, v{OO+1}, v{OO+2}'); A(f'v_max3_u32 v{T3}, v{OO+3}, v{OO+4}, v{OO+5}')
    A(f'v_max_f32_dpp v{T4}, v{T4}, v{T4} row_ror:4 {DPP}')
    A(f'v_max3_u32 v{T2}, v{T2}, v{OO+6}, v{OO+7}'); A(f'v_max3_u32 v{T3}, v{T3}, v{OO+8}, v{OO+9}')
    A(f'v_max_f32_dpp v{T4}, v{T4}, v{T4} row_ror:8 {DPP}')
    A(f'v_max_u32 v{T2}, v{T2}, v{T3}'); A(f'v_cmp_eq_u32 vcc, -1, v{T2}')
    A(f'v_sub_f32 v{T4}, v{OO+8}, v{T4}')
    retry('L_CB_poll', 'L_CB_ok', sleep=DSLEEP)
    g.lab('L_CB_ok')
    stamp(6)
    A(f'v_mul_f32 v{T4}, {fx(1.4426950408889634)}, v{T4}')
    A(f'v_exp_f32 v{T4}, v{T4}'); g.nop(1)
    A(f'v_mul_f32 v{OO+8}, v{T4}, v{OO+9}')
    for k in range(0, 8, 2): A(f'v_pk_mul_f32 {vr(OO+k,2)}, {vr(OO+k,2)}, {vr(T4,2)} op_sel_hi:[1,0]')
    for sh in (2, 4, 8):
        A(f'v_add_f32_dpp v{OO+8}, v{OO+8}, v{OO+8} row_ror:{sh} {DPP}')
        if sh == 8: A(f'v_add_f32_dpp v{OO}, v{OO}, v{OO} row_ror:{sh} {DPP}'); A(f'v_rcp_f32 v{T4}, v{OO+8}')
        for k in range(1 if sh == 8 else 0, 8): A(f'v_add_f32_dpp v{OO+k}, v{OO+k}, v{OO+k} row_ror:{sh} {DPP}')
    for k in range(0, 8, 2): A(f'v_pk_mul_f32 {vr(OO+k,2)}, {vr(OO+k,2)}, {vr(T4,2)} op_sel_hi:[1,0]')
    for k in range(4): A(f'v_cvt_pk_bf16_f32 v{V_VEC+k}, v{OO+2*k}, v{OO+2*k+1}')
    g.nop(2)
    tile_mfma(R1, V_VEC, V_ACC)
    hb_combine(V_ACC, V_VEC+4)
    A('s_mov_b64 exec, 0xffff')
    A(f'ds_write_b128 v{V_L4}, {vr(V_VEC+4,4)} offset:{OPART}')
    A('s_mov_b64 exec, -1')
    last_arriver(0, f's{S_NT}', 'L_fin')
    for w in range(5): A(f'ds_read_b128 {vr(R0+4*w,4)}, v{V_L16} offset:{OPART+256*w}')
    A('s_waitcnt lgkmcnt(1)')
    for a, b in ((0, 1), (2, 3), (0, 2)):
        for k in (0, 2): A(f'v_pk_add_f32 {vr(R0+4*a+k,2)}, {vr(R0+4*a+k,2)}, {vr(R0+4*b+k,2)}')
    A('s_waitcnt lgkmcnt(0)')
    for k in (0, 2): A(f'v_pk_add_f32 {vr(R0+k,2)}, {vr(R0+k,2)}, {vr(R0+16+k,2)}')
    for k in range(4): san(R0+k)
    store16(R0, V_L16, S_M+3)
    stamp(7)
    A('s_branch L_fin')
    g.lab('L_CB_idle')
    if ARAT == 2: A('s_barrier')
    A('s_branch L_fin')

    g.lab('L_S')
    KR, VRR, VT = R0, R1, R0
    A(f's_lshr_b32 s{S_G}, s{S_IDX}, 3'); A(f's_and_b32 s{S_KS}, s{S_IDX}, 7')
    A(f's_lshl_b32 s{S_A}, s{S_G}, 21'); A(f's_lshl_b32 s{S_B}, s{S_KS}, 16'); A(f's_add_u32 s{S_A}, s{S_A}, s{S_B}')
    A(f's_lshl_b32 s{S_B}, s{S_WAVE}, 13'); A(f's_add_u32 s{S_A}, s{S_A}, s{S_B}'); A(f's_add_u32 s{S_A}, s{S_A}, {6144*256}')
    A(f'v_lshrrev_b32 v{T1}, 4, v{V_LANE}'); A(f'v_and_b32 v{T0}, 15, v{V_LANE}')
    A(f'v_xor_b32 v{T4}, v{T0}, v{T1}'); A(f'v_lshlrev_b32 v{T2}, 4, v{T4}'); A(f'v_lshl_add_u32 v{T2}, v{T1}, 8, v{T2}')
    A(f'v_add_u32 v{V_VEC}, s{S_A}, v{T2}')
    A(f'v_xor_b32 v{V_VEC+1}, 64, v{V_VEC}'); A(f'v_xor_b32 v{V_VEC+2}, {128+4096}, v{V_VEC}'); A(f'v_xor_b32 v{V_VEC+3}, {192+4096}, v{V_VEC}')
    A(f'v_lshlrev_b32 v{T2}, 11, v{T1}'); A(f'v_lshl_add_u32 v{T0}, v{T0}, 4, v{T2}')
    A(f'v_add_u32 v{V_ADDR2}, s{S_A}, v{T0}')
    A(f's_add_u32 s{S_B}, s{S_B}, {KLDS}'); A(f's_mov_b32 m0, s{S_B}')
    A(f'v_bfe_u32 v{T2}, v{V_LANE}, 2, 2'); A(f'v_lshlrev_b32 v{T2}, 11, v{T2}')
    A(f'v_and_b32 v{T3}, 3, v{V_LANE}'); A(f'v_lshl_add_u32 v{T2}, v{T3}, 8, v{T2}')
    A(f'v_lshl_add_u32 v{T2}, v{T4}, 4, v{T2}'); A(f'v_add_u32 v{V_KA}, s{S_B}, v{T2}')
    for kk in range(1, 4): A(f'v_xor_b32 v{V_KA+kk}, {kk*64}, v{V_KA}')
    lane_consts(l16=True)
    A(f'v_and_b32 v{T0}, 1, v{V_LANE}'); A(f'v_lshlrev_b32 v{T2}, 8, v{T0}'); A(f'v_lshl_add_u32 v{V_HB}, v{T1}, 4, v{T2}')
    A(f'v_lshlrev_b32 v{V_L4}, 5, v{T0}')
    A(f's_lshl_b32 s{S_C}, s{S_WAVE}, 2'); A(f'v_add_u32 v{V_OPA}, s{S_C}, v{V_L4}')
    A(f'v_lshrrev_b32 v{V_ADDR}, 5, v{V_LANE}'); A(f'v_lshlrev_b32 v{V_ADDR}, 12, v{V_ADDR}'); A(f'v_and_b32 v{T0}, 31, v{V_LANE}'); A(f'v_lshl_add_u32 v{V_ADDR}, v{T0}, 4, v{V_ADDR}')
    A(f's_lshl_b32 s{S_M}, s{S_G}, 4'); A(f's_add_u32 s{S_M}, s{S_M}, s{S_KS}'); A(f's_lshl_b32 s{S_M}, s{S_M}, 9'); A(f's_add_u32 s{S_M}, s{S_M}, {H2O}')
    A(f's_lshl_b32 s{S_M+1}, s{S_IDX}, 7'); A(f's_add_u32 s{S_M+1}, s{S_M+1}, {ML}')
    waitk()
    srd_ws()
    A(f's_cmp_eq_u32 s{S_WAVE}, 0'); A('s_cbranch_scc0 L_S_k')
    for k in range(4): A(f'v_mov_b32 v{V_ACC+k}, -1')
    A(f'buffer_store_dwordx4 {vr(V_ACC,4)}, v{V_ADDR}, {sq(SRD_WS)}, s{S_M} offen sc1')
    store16(V_ACC, V_L16, S_M+1, mask='1')
    def s_flag():
        epoch_load()
        A('s_waitcnt vmcnt(0)')
        epoch_take('S0', sleep=1)
        A(f'v_mov_b32 v{V_EP}, s{S_E0}'); A(f'v_mov_b32 v{V_EP+1}, s{S_E1}')
        A(f's_lshl_b32 s{S_E}, s{S_IDX}, 3'); A(f's_add_u32 s{S_E}, s{S_E}, {FLS}')
        A('s_mov_b64 exec, 1')
        A(f'buffer_store_dwordx2 {vr(V_EP,2)}, v{V_L16}, {sq(SRD_WS)}, s{S_E} offen sc1')
        A('s_mov_b64 exec, -1')
    if GATE: s_flag()
    g.lab('L_S_k')
    if GATE: A('s_barrier')
    stamp(7)
    for j in range(8):
        if j == 4: A(f's_add_u32 s{S_B}, s{S_B}, 4096'); A(f's_mov_b32 m0, s{S_B}'); g.nop(1)
        A(f'global_load_lds_dwordx4 v{V_VEC+j//2}, {sp(P_K)} offset:{1024*(j%4)} nt')
    A('s_barrier')
    def v_loads():
        for t in range(8):
            A(f'global_load_dwordx4 {vr(VRR+4*t,4)}, v{V_ADDR2}, {sp(P_V)} offset:{256*t} nt')
    if VH < 8:
        A(f's_cmp_ge_u32 s{S_WAVE}, {VH}'); A('s_cbranch_scc0 L_S_v')
        A('s_waitcnt vmcnt(0)')
        for T in range(2):
            for kk in range(4):
                A(f'ds_read_b128 {vr(KR+16*T+4*kk,4)}, v{V_KA+kk} offset:{1024*T}')
        A('s_waitcnt lgkmcnt(0)')
        A('s_barrier')
        v_loads()
        stamp(2)
        A('s_branch L_S_qk')
        g.lab('L_S_v')
    v_loads()
    stamp(2)
    A(f's_cmp_eq_u32 s{S_WAVE}, 0'); A('s_cbranch_scc0 L_S_b1')
    if not GATE: s_flag()
    A(f's_lshl_b32 s{S_A}, s{S_G}, 12'); A(f's_add_u32 s{S_A}, s{S_A}, {H1}')
    Q0 = 32
    A(f'v_lshlrev_b32 v{T4}, 2, v{V_LANE}')
    g.lab('L_S_poll')
    for j in range(4): A(f'buffer_load_dwordx4 {vr(Q0+4*j,4)}, v{V_L16}, {sq(SRD_WS)}, s{S_A} offen offset:{1024*j} sc1')
    A('s_waitcnt vmcnt(0)')
    tag_check(Q0, 4, T2, T3)
    retry('L_S_poll', 'L_S_ok', sleep=QSL)
    g.lab('L_S_ok')
    stamp(3)
    A(f'v_pk_add_f32 {vr(Q0,2)}, {vr(Q0,2)}, {vr(Q0+8,2)}'); A(f'v_pk_add_f32 {vr(Q0+4,2)}, {vr(Q0+4,2)}, {vr(Q0+12,2)}')
    A(f'v_cvt_pk_bf16_f32 v{T2}, v{Q0}, v{Q0+1}'); A(f'v_cvt_pk_bf16_f32 v{T3}, v{Q0+4}, v{Q0+5}')
    A(f'ds_write2_b32 v{T4}, v{T2}, v{T3} offset0:{VEC//4} offset1:{VEC//4+64}')
    g.lab('L_S_b1')
    A('s_waitcnt vmcnt(8)')
    for T in range(2):
        for kk in range(4):
            A(f'ds_read_b128 {vr(KR+16*T+4*kk,4)}, v{V_KA+kk} offset:{1024*T}')
    A('s_waitcnt lgkmcnt(0)')
    A('s_barrier')
    g.lab('L_S_qk')
    stamp(4)
    for kk in range(4): A(f'ds_read_b128 {vr(V_VEC+4*kk,4)}, v{V_HB} offset:{VEC+64*kk}')
    SC = V_ACC
    for kk in range(4):
        A(f's_waitcnt lgkmcnt({3-kk})')
        for T in range(2):
            c = '0' if kk == 0 else vr(SC+4*T, 4)
            A(f'v_mfma_f32_16x16x32_bf16 {vr(SC+4*T,4)}, {vr(KR+16*T+4*kk,4)}, {vr(V_VEC+4*kk,4)}, {c}')
    A(f's_mov_b32 s{S_C}, {fx(1.4426950408889634)}')
    A(f's_mov_b32 s{S_SC}, {fx(128**-0.5)}')
    A(f's_lshl_b32 s{S_B}, s{S_WAVE}, 10'); A(f's_add_u32 s{S_B}, s{S_B}, {OPART}')
    A(f'v_lshl_add_u32 v{V_ADDR2}, v{V_LANE}, 5, s{S_B}')
    g.nop(3)
    for k in range(8): rnd(SC+k, SC+k)
    for k in range(0, 8, 2): A(f'v_pk_mul_f32 {vr(SC+k,2)}, {vr(SC+k,2)}, {sp(S_SC)} op_sel_hi:[1,0]')
    for k in range(8): rnd(SC+k, SC+k)
    A(f'v_max3_f32 v{T2}, v{SC}, v{SC+1}, v{SC+2}'); A(f'v_max3_f32 v{T3}, v{SC+3}, v{SC+4}, v{SC+5}'); A(f'v_max3_f32 v{T2}, v{T2}, v{SC+6}, v{SC+7}'); A(f'v_max_f32 v{T2}, v{T2}, v{T3}')
    for sw in ('v_permlane16_swap_b32', 'v_permlane32_swap_b32'):
        A(f'v_mov_b32 v{T3}, v{T2}'); g.nop(2); A(f'{sw} v{T2}, v{T3}'); g.nop(1); A(f'v_max_f32 v{T2}, v{T2}, v{T3}')
    A(f'ds_write_b32 v{V_OPA}, v{T2} offset:{WMAX}')
    A('s_waitcnt lgkmcnt(0)')
    A('s_barrier')
    MX = V_VEC
    A(f'ds_read_b128 {vr(MX,4)}, v{V_L4} offset:{WMAX}'); A(f'ds_read_b128 {vr(MX+4,4)}, v{V_L4} offset:{WMAX+16}')
    tile_perm(VRR, VT, after=lambda tp: A(f's_waitcnt vmcnt({6-2*tp})')) if PERMFIRST else None
    A('s_waitcnt lgkmcnt(0)')
    A(f'v_max3_f32 v{T4}, v{MX}, v{MX+1}, v{MX+2}'); A(f'v_max3_f32 v{T3}, v{MX+3}, v{MX+4}, v{MX+5}'); A(f'v_max3_f32 v{T4}, v{T4}, v{MX+6}, v{MX+7}'); A(f'v_max_f32 v{T4}, v{T4}, v{T3}')
    A(f'v_mul_f32 v{T3}, s{S_C}, v{T4}')
    for k in range(8): A(f'v_fma_f32 v{SC+k}, v{SC+k}, s{S_C}, -v{T3}')
    for k in range(8): A(f'v_exp_f32 v{SC+k}, v{SC+k}')
    PP = V_VEC + 8
    ES = V_VEC
    A(f'v_add_f32 v{ES}, v{SC}, v{SC+1}')
    for k in range(4): A(f'v_cvt_pk_bf16_f32 v{PP+k}, v{SC+2*k}, v{SC+2*k+1}')
    A(f'v_add_f32 v{ES+1}, v{SC+2}, v{SC+3}'); A(f'v_add_f32 v{ES+2}, v{SC+4}, v{SC+5}'); A(f'v_add_f32 v{ES+3}, v{SC+6}, v{SC+7}')
    if not PERMFIRST: tile_perm(VRR, VT, after=lambda tp: A(f's_waitcnt vmcnt({6-2*tp})'))
    stamp(5)
    g.nop(1)
    for j in range(8):
        A(f'v_mfma_f32_16x16x32_bf16 {vr(V_ACC+4*j,4)}, {vr(PP,4)}, {vr(VT+4*j,4)}, 0')
        if j == 0: A(f'v_add_f32 v{ES}, v{ES}, v{ES+1}'); A(f'v_add_f32 v{ES+2}, v{ES+2}, v{ES+3}')
        if j == 1: A(f'v_add_f32 v{T2}, v{ES}, v{ES+2}')
        if j == 2: A(f'v_mov_b32 v{T3}, v{T2}')
        if j == 4: A(f'v_permlane16_swap_b32 v{T2}, v{T3}')
        if j == 5: A(f'v_add_f32 v{T2}, v{T2}, v{T3}')
        if j == 6: A(f'v_mov_b32 v{T3}, v{T2}')
    A('s_mov_b64 exec, 0xffff')
    for j in range(8):
        A(f'ds_write2_b32 v{V_ADDR2}, v{V_ACC+4*j}, v{V_ACC+4*j+1} offset0:{j} offset1:{128+j}')
        if j == 0: g.nop(1)
    A('s_mov_b64 exec, -1')
    A(f'v_permlane32_swap_b32 v{T2}, v{T3}')
    g.nop(1)
    A(f'v_add_f32 v{T2}, v{T2}, v{T3}')
    A(f'ds_write_b32 v{V_OPA}, v{T2} offset:{WSUM}')
    A('s_waitcnt lgkmcnt(0)')
    A('s_barrier')
    A(f's_cmp_eq_u32 s{S_WAVE}, 0'); A('s_cbranch_scc0 L_S_ml')
    PB = R1
    for w in range(8): A(f'ds_read_b128 {vr(PB+4*w,4)}, v{V_L16} offset:{OPART+1024*w}')
    A('s_waitcnt lgkmcnt(4)')
    for a, b in ((0, 1), (2, 3), (0, 2)):
        for k in (0, 2): A(f'v_pk_add_f32 {vr(PB+4*a+k,2)}, {vr(PB+4*a+k,2)}, {vr(PB+4*b+k,2)}')
    A('s_waitcnt lgkmcnt(0)')
    for a, b in ((4, 5), (6, 7), (4, 6), (0, 4)):
        for k in (0, 2): A(f'v_pk_add_f32 {vr(PB+4*a+k,2)}, {vr(PB+4*a+k,2)}, {vr(PB+4*b+k,2)}')
    for k in range(4): san(PB+k)
    A(f'buffer_store_dwordx4 {vr(PB,4)}, v{V_ADDR}, {sq(SRD_WS)}, s{S_M} offen sc1')
    stamp(6)
    A('s_branch L_fin')
    g.lab('L_S_ml')
    A(f's_cmp_eq_u32 s{S_WAVE}, 1'); A('s_cbranch_scc0 L_fin')
    A(f'ds_read_b128 {vr(V_VEC,4)}, v{V_L4} offset:{WSUM}'); A(f'ds_read_b128 {vr(V_VEC+4,4)}, v{V_L4} offset:{WSUM+16}')
    A(f'v_lshlrev_b32 v{T0}, 3, v{V_LANE}')
    san(T4)
    A('s_waitcnt lgkmcnt(0)')
    for k in (0, 2): A(f'v_pk_add_f32 {vr(V_VEC+k,2)}, {vr(V_VEC+k,2)}, {vr(V_VEC+4+k,2)}')
    A(f'v_pk_add_f32 {vr(V_VEC,2)}, {vr(V_VEC,2)}, {vr(V_VEC+2,2)}')
    A(f'v_add_f32 v{T5}, v{V_VEC}, v{V_VEC+1}')
    san(T5)
    A('s_mov_b64 exec, 3')
    A(f'buffer_store_dwordx2 {vr(T4,2)}, v{T0}, {sq(SRD_WS)}, s{S_M+1} offen sc1')
    A('s_mov_b64 exec, -1')
    stamp(8)
    A('s_branch L_fin')

    g.lab('L_T')
    A(f's_sub_u32 s{S_IDX}, s2, 256')
    A(f's_mov_b32 s{S_ST0}, 0')
    W1F = 16; B1F = 26; W2P = 36; TT0 = 42; U = 52; Z = 62; G_ = 72; ACC = 80; RAW = 96; CV1 = 124; CV0 = 126
    RC = 2*NB - RS
    assert NB <= RS <= 16 and RC >= 1
    A(f's_lshr_b32 s{S_G}, s{S_IDX}, 4'); A(f's_lshl_b32 s{S_G}, s{S_G}, 3'); A(f's_and_b32 s{S_A}, s{S_IDX}, 7'); A(f's_or_b32 s{S_G}, s{S_G}, s{S_A}')
    A(f'v_lshlrev_b32 v{T1}, 4, v0'); A(f'v_lshlrev_b32 v{T2}, 1, v0'); A(f'v_add_u32 v{T2}, 8192, v{T2}')
    waitk()
    if TGATE:
        A(f's_bitcmp1_b32 s{S_IDX}, 3'); A('s_cbranch_scc1 L_T_go')
        A(f'v_mov_b32 v{T0}, 0')
        g.lab('L_T_gate')
        A(f'global_load_dwordx2 {vr(RAW,2)}, v{T0}, {sp(P_DBG)} sc1')
        A(f'global_load_dwordx2 {vr(RAW+2,2)}, v{T0}, {sp(P_WS)} offset:{H0T+8} sc1')
        A('s_waitcnt vmcnt(0)')
        A(f'v_cmp_ne_u64 vcc, {vr(RAW,2)}, {vr(RAW+2,2)}')
        A(f'v_cmp_eq_u32 {sp(S_M)}, 0, v{RAW+1}')
        A(f's_or_b64 vcc, vcc, {sp(S_M)}')
        retry('L_T_gate', 'L_T_go', sleep=4)
        g.lab('L_T_go')
    A(f'global_load_dwordx4 {vr(RAW,4)}, v{T1}, {sp(P_W1)}')
    A(f'global_load_dwordx4 {vr(RAW+4,4)}, v{T1}, {sp(P_B1)}')
    A(f'global_load_dwordx4 {vr(W2P,4)}, v{T1}, {sp(P_W2)}')
    A(f'global_load_ushort v{RAW+8}, v{T2}, {sp(P_W1)}')
    A(f'global_load_ushort v{RAW+9}, v{T2}, {sp(P_B1)}')
    A(f'global_load_ushort v{W2P+4}, v{T2}, {sp(P_W2)}')
    srd_ws()
    C1 = fx(-2.0*0.7978845608028654*0.044715*1.4426950408889634)
    C0 = fx(-2.0*0.7978845608028654*1.4426950408889634)
    for k in range(2): A(f'v_mov_b32 v{CV1+k}, {C1}'); A(f'v_mov_b32 v{CV0+k}, {C0}')
    A(f's_lshl_b32 s{S_A}, s{S_G}, 16'); A(f's_or_b32 s{S_A}, s{S_A}, 0x3f800000')
    A(f's_mov_b32 s{S_SC}, {hex(0x80000000 | ((127+EMIN+RS-NB) << 23))}')
    A(f's_bitcmp1_b32 s{S_IDX}, 3'); A(f's_cselect_b32 s{S_SC}, {hex((127+EMIN) << 23)}, s{S_SC}')
    for k in range(16): A(f'v_mov_b32 v{ACC+k}, 0')
    A('s_waitcnt vmcnt(0)')
    stamp(2)
    if stamps: A(f's_memtime s[{S_ST+16}:{S_ST+17}]')
    for k in range(4):
        A(f'v_lshlrev_b32 v{W1F+2*k}, 16, v{RAW+k}'); A(f'v_and_b32 v{W1F+2*k+1}, 0xffff0000, v{RAW+k}')
        A(f'v_lshlrev_b32 v{B1F+2*k}, 16, v{RAW+4+k}'); A(f'v_and_b32 v{B1F+2*k+1}, 0xffff0000, v{RAW+4+k}')
    A(f'v_lshlrev_b32 v{W1F+8}, 16, v{RAW+8}'); A(f'v_lshlrev_b32 v{B1F+8}, 16, v{RAW+9}')
    def t0_from(sreg):
        for k in range(9): A(f'v_mul_f32 v{TT0+k}, s{sreg}, v{W1F+k}')
        for k in range(9): rnd(TT0+k, TT0+k)
    def gelu_row(acc, first=False):
        n = 9
        P = range(0, 8, 2)
        if PK:
            for k in P: A(f'v_pk_fma_f32 {vr(U+k,2)}, {vr(TT0+k,2)}, {sp(S_SC)}, {vr(B1F+k,2)} op_sel_hi:[1,0,1]')
            A(f'v_fma_f32 v{U+8}, v{TT0+8}, s{S_SC}, v{B1F+8}')
        else:
            for k in range(n): A(f'v_fma_f32 v{U+k}, v{TT0+k}, s{S_SC}, v{B1F+k}')
        for k in range(n): rnd(U+k, U+k)
        if PK:
            for k in P: A(f'v_pk_mul_f32 {vr(Z+k,2)}, {vr(U+k,2)}, {vr(U+k,2)}')
            A(f'v_mul_f32 v{Z+8}, v{U+8}, v{U+8}')
            for k in P: A(f'v_pk_fma_f32 {vr(Z+k,2)}, {vr(Z+k,2)}, {vr(CV1,2)}, {vr(CV0,2)}')
            A(f'v_fma_f32 v{Z+8}, v{Z+8}, v{CV1}, v{CV0}')
            for k in P: A(f'v_pk_mul_f32 {vr(Z+k,2)}, {vr(Z+k,2)}, {vr(U+k,2)}')
            A(f'v_mul_f32 v{Z+8}, v{Z+8}, v{U+8}')
        else:
            for k in range(n): A(f'v_mul_f32 v{Z+k}, v{U+k}, v{U+k}')
            for k in range(n): A(f'v_fmaak_f32 v{Z+k}, v{Z+k}, v{CV1}, {C0}')
            for k in range(n): A(f'v_mul_f32 v{Z+k}, v{Z+k}, v{U+k}')
        for k in range(n): A(f'v_exp_f32 v{Z+k}, v{Z+k}')
        if PK:
            for k in P: A(f'v_pk_add_f32 {vr(Z+k,2)}, {vr(Z+k,2)}, 1.0 op_sel_hi:[1,0]')
            A(f'v_add_f32 v{Z+8}, 1.0, v{Z+8}')
        else:
            for k in range(n): A(f'v_add_f32 v{Z+k}, 1.0, v{Z+k}')
        for k in range(n): A(f'v_rcp_f32 v{Z+k}, v{Z+k}')
        if PK:
            for k in P: A(f'v_pk_mul_f32 {vr(Z+k,2)}, {vr(Z+k,2)}, {vr(U+k,2)}')
            A(f'v_mul_f32 v{Z+8}, v{Z+8}, v{U+8}')
        else:
            for k in range(n): A(f'v_mul_f32 v{Z+k}, v{Z+k}, v{U+k}')
        for k in range(4): A(f'v_cvt_pk_bf16_f32 v{G_+k}, v{Z+2*k}, v{Z+2*k+1}')
        A(f'v_cvt_pk_bf16_f32 v{G_+4}, v{Z+8}, 0')
        for k in range(5):
            if k == 0 and first: A(f'v_dot2_f32_bf16 v{acc}, v{G_+k}, v{W2P+k}, 0'); g.nop(3)
            else: A(f'v_dot2c_f32_bf16 v{acc}, v{G_+k}, v{W2P+k}')
    t0_from(S_A)
    epoch_load(RAW)
    A(f's_bitcmp1_b32 s{S_IDX}, 3'); A(f's_cselect_b32 s{S_NT}, {RS}, {RC}')
    A(f's_mov_b32 s{S_I}, 0')
    A('.p2align 3')
    g.lab('L_T_loop')
    gelu_row(T4, first=True)
    A(f's_add_u32 s{S_SC}, s{S_SC}, {1<<23}')
    A(f's_cmp_eq_u32 s{S_I}, {NB-1}'); A(f's_cselect_b32 s{S_SC}, {hex(0x80000000 | ((127+EMIN) << 23))}, s{S_SC}')
    A(f's_set_gpr_idx_on s{S_I}, gpr_idx(DST)')
    g.nop(1)
    A(f'v_mov_b32 v{ACC}, v{T4}')
    A('s_set_gpr_idx_off')
    A(f's_add_u32 s{S_I}, s{S_I}, 1'); A(f's_cmp_lt_u32 s{S_I}, s{S_NT}'); A('s_cbranch_scc1 L_T_loop')
    g.lab('L_T_rows')
    stamp(3)
    if stamps: A(f's_memtime s[{S_ST+18}:{S_ST+19}]')
    g.nop(3)
    for i in range(8):
        A(f'v_add_f32_dpp v{U+i}, v{ACC+2*i}, v{ACC+2*i} row_ror:8 row_mask:0xf bank_mask:0x3')
        A(f'v_add_f32_dpp v{U+i}, v{ACC+2*i+1}, v{ACC+2*i+1} row_ror:8 row_mask:0xf bank_mask:0xc')
    for i in range(4):
        A(f'v_add_f32_dpp v{Z+i}, v{U+2*i}, v{U+2*i} row_half_mirror row_mask:0xf bank_mask:0x5')
        A(f'v_add_f32_dpp v{Z+i}, v{U+2*i+1}, v{U+2*i+1} row_half_mirror row_mask:0xf bank_mask:0xa')
    for qp in ('[1,0,3,2]', '[2,3,0,1]'):
        for i in range(4): A(f'v_add_f32_dpp v{Z+i}, v{Z+i}, v{Z+i} quad_perm:{qp} {DPP}')
    g.nop(1)
    A(f'v_permlane16_swap_b32 v{Z}, v{Z+1}'); A(f'v_permlane16_swap_b32 v{Z+2}, v{Z+3}')
    g.nop(1)
    A(f'v_add_f32 v{Z}, v{Z}, v{Z+1}'); A(f'v_add_f32 v{Z+2}, v{Z+2}, v{Z+3}')
    g.nop(2)
    A(f'v_permlane32_swap_b32 v{Z}, v{Z+2}')
    A(f'v_bfe_u32 v{T0}, v{V_LANE}, 3, 1'); A(f'v_bfe_u32 v{T1}, v{V_LANE}, 2, 1'); A(f'v_lshl_add_u32 v{T0}, v{T1}, 1, v{T0}')
    A(f'v_lshrrev_b32 v{T1}, 4, v{V_LANE}'); A(f'v_lshl_add_u32 v{T0}, v{T1}, 2, v{T0}')
    A(f's_lshl_b32 s{S_B}, s{S_WAVE}, 6'); A(f'v_lshl_add_u32 v{T0}, v{T0}, 2, s{S_B}')
    A(f'v_add_f32 v{Z}, v{Z}, v{Z+2}')
    A(f'ds_write_b32 v{T0}, v{Z} offset:{TRED}')
    A('s_waitcnt vmcnt(0) lgkmcnt(0)')
    epoch_take('T', RAW)
    A('s_barrier')
    A(f's_cmp_eq_u32 s{S_WAVE}, 7'); A('s_cbranch_scc0 L_T_pubdone')
    A(f'v_and_b32 v{T0}, 7, v{V_LANE}'); A(f'v_lshlrev_b32 v{T1}, 3, v{T0}'); A(f'v_lshlrev_b32 v{T0}, 4, v{T0}')
    for w in range(8): A(f'ds_read_b64 {vr(RAW+2*w,2)}, v{T1} offset:{TRED+64*w}')
    A(f's_lshl_b32 s{S_A}, s{S_G}, 8'); A(f's_bitcmp1_b32 s{S_IDX}, 3'); A(f's_cselect_b32 s{S_B}, 0, 128'); A(f's_add_u32 s{S_A}, s{S_A}, s{S_B}'); A(f's_add_u32 s{S_A}, s{S_A}, {TB}')
    A('s_waitcnt lgkmcnt(0)')
    for a, b in ((0, 1), (2, 3), (4, 5), (6, 7), (0, 2), (4, 6), (0, 4)):
        A(f'v_pk_add_f32 {vr(RAW+2*a,2)}, {vr(RAW+2*a,2)}, {vr(RAW+2*b,2)}')
    A(f'v_mov_b32 v{RAW+2}, s{S_E0}'); A(f'v_mov_b32 v{RAW+3}, s{S_E1}')
    store16(RAW, T0, S_A, mask='0xff')
    stamp(4)
    g.lab('L_T_pubdone')
    A(f's_cmp_lt_u32 s{S_IDX}, {NE}'); A('s_cbranch_scc0 L_fin')
    A('s_setprio 3')
    A(f's_cmp_ge_u32 s{S_WAVE}, 5'); A('s_cbranch_scc1 L_E_b12')
    A('s_branch L_E')
    g.lab('L_E0')
    epoch_load()
    A('s_waitcnt vmcnt(0)')
    epoch_take('E0', sleep=2)
    g.lab('L_E0b')
    A(f's_mov_b32 s{S_ST0}, 1')
    A(f's_cmp_ge_u32 s{S_WAVE}, 5'); A('s_cbranch_scc1 L_E_tb')
    g.lab('L_E')
    TID8 = V_ADDR; XP = V_ADDR2; MM = U
    PA = ACC
    A(f'v_min_u32 v{T5}, 287, v0')
    A(f'v_lshlrev_b32 v{TID8}, 3, v{T5}'); A(f'v_lshlrev_b32 v{T0}, 2, v{T5}')
    A(f'global_load_dword v{XP}, v{T0}, {sp(P_X)}')
    A(f'v_mov_b32 v{T0}, 0'); A(f'global_load_ushort v{V_HB}, v{T0}, {sp(P_B2)}')
    A(f'global_load_ushort v{V_L4}, v{T0}, {sp(P_X)}')
    lane_consts(l16=True)
    A(f's_mov_b32 s{S_D}, {FLC}')
    g.lab('L_E_fl')
    A(f'buffer_load_dwordx4 {vr(PA,4)}, v{V_L16}, {sq(SRD_WS)}, s{S_D} offen sc1')
    A('s_waitcnt vmcnt(0)')
    A('s_mov_b32 exec_hi, 0x7fffffff')
    A(f'v_cmp_ne_u64 vcc, {sp(S_E0)}, {vr(PA,2)}'); A(f'v_cmp_ne_u64 {sp(S_M+2)}, {sp(S_E0)}, {vr(PA+2,2)}')
    A('s_mov_b64 exec, -1')
    A(f's_or_b64 vcc, vcc, {sp(S_M+2)}')
    retry('L_E_fl', 'L_E_pollM', sleep=8)
    g.lab('L_E_pollM')
    def h3_loads():
        for p in range(14):
            A(f's_mov_b32 s{S_T}, {H3 + p*2304}')
            A(f'buffer_load_dwordx2 {vr(PA+2*p,2)}, v{TID8}, {sq(SRD_WS)}, s{S_T} offen sc1')
    for rho in range(3):
        for q in range(4):
            A(f's_mov_b32 s{S_T}, {HM + rho*9216 + q*2304}')
            A(f'buffer_load_dwordx2 {vr(MM+2*(rho*4+q),2)}, v{TID8}, {sq(SRD_WS)}, s{S_T} offen sc1')
    A(f'v_mov_b32 v{T0}, 0')
    SB3 = RAW + 16
    for rho in range(3):
        A(f's_mov_b32 s{S_T}, {HM + rho*9216 + 2304}')
        A(f'buffer_load_dword v{SB3+rho}, v{T0}, {sq(SRD_WS)}, s{S_T} offen sc1')
    h3_loads()
    A('s_waitcnt vmcnt(14)')
    sent_check(list(range(MM, MM+24)) + [SB3, SB3+1, SB3+2], T2, T3)
    A('s_cmp_eq_u64 vcc, 0'); A('s_cbranch_scc1 L_E_okM')
    spin('L_E_okM')
    A('s_waitcnt vmcnt(0)')
    A('s_sleep 4')
    A('s_branch L_E_pollM')
    g.lab('L_E_okM')
    stamp(5)
    A(f'v_add_f32 v{T2}, v{SB3}, v{SB3+1}'); A(f'v_add_f32 v{T2}, v{T2}, v{SB3+2}'); A(f'v_lshlrev_b32 v{V_L4}, 16, v{V_L4}')
    A(f'v_readfirstlane_b32 s{S_K2}, v{T2}'); A(f'v_readfirstlane_b32 s{S_K1}, v{V_L4}')
    for q in range(4): A(f'v_pk_add_f32 {vr(MM+2*q,2)}, {vr(MM+2*q,2)}, {vr(MM+8+2*q,2)}')
    for q in range(4): A(f'v_pk_add_f32 {vr(MM+2*q,2)}, {vr(MM+2*q,2)}, {vr(MM+16+2*q,2)}')
    for q in range(8): rnd(MM+q, MM+q)
    GA, SB, CB, GB = MM, MM+2, MM+4, MM+6
    X0 = MM + 8
    for k in range(2): A(f'v_add_f32 v{CB+k}, 1.0, v{CB+k}')
    for k in range(2): rnd(CB+k, CB+k)
    A(f'v_lshlrev_b32 v{X0}, 16, v{XP}'); A(f'v_and_b32 v{X0+1}, 0xffff0000, v{XP}')
    A(f'v_lshlrev_b32 v{V_HB}, 16, v{V_HB}')
    A(f'ds_write_b64 v{TID8}, {vr(GB,2)} offset:{GBV}')
    A(f's_movk_i32 s{S_T}, 288'); A(f'v_cmp_gt_u32 {sp(S_SAVE)}, s{S_T}, v0')
    RW = MM + 10; RR = MM + 11; LV = MM + 12
    A(f's_lshl_b32 s{S_B}, s{S_WAVE}, 5'); A(f'v_lshrrev_b32 v{T0}, 4, v{V_LANE}'); A(f'v_lshl_add_u32 v{RW}, v{T0}, 3, s{S_B}')
    A(f'v_and_b32 v{T0}, 15, v{V_LANE}'); A(f'v_lshlrev_b32 v{RR}, 4, v{T0}')
    A(f'v_cmp_gt_u32 vcc, 10, v{T0}'); A(f'v_mov_b32 v{T1}, 1.0'); g.nop(1); A(f'v_cndmask_b32 v{LV}, 0, v{T1}, vcc')
    A(f'v_min_u32 v{RR}, 144, v{RR}')
    A(f'v_cndmask_b32 v{LV+1}, 0, v{T1}, {sp(S_SAVE)}')
    g.lab('L_E_poll3')
    A('s_waitcnt vmcnt(0)')
    sent_check(range(PA, PA+28), T2, T3)
    A('s_cmp_eq_u64 vcc, 0'); A('s_cbranch_scc1 L_E_ok3')
    spin('L_E_ok3')
    h3_loads()
    A('s_branch L_E_poll3')
    g.lab('L_E_ok3')
    stamp(6)
    for a, b in ((0, 7), (1, 8), (2, 9), (3, 10), (4, 11), (5, 12), (6, 13), (0, 1), (2, 3), (4, 5), (0, 6), (2, 4), (0, 2)):
        A(f'v_pk_add_f32 {vr(PA+2*a,2)}, {vr(PA+2*a,2)}, {vr(PA+2*b,2)}')
    X1 = PA + 2; HH = PA + 4; Q4 = PA + 12
    for k in range(2): rnd(PA+k, PA+k)
    for k in range(2): A(f'v_mul_f32 v{PA+k}, v{PA+k}, v{GA+k}')
    for k in range(2): rnd(PA+k, PA+k)
    for k in range(2): A(f'v_add_f32 v{X1+k}, v{PA+k}, v{X0+k}')
    for k in range(2): rnd(X1+k, X1+k)
    def block_stats(val, red, sk, mean_out, rstd_out):
        A(f'v_subrev_f32 v{T2}, s{sk}, v{val}'); A(f'v_subrev_f32 v{T0}, s{sk}, v{val+1}')
        A(f'v_mul_f32 v{T3}, v{T2}, v{T2}'); A(f'v_add_f32 v{T2}, v{T2}, v{T0}'); A(f'v_fmac_f32 v{T3}, v{T0}, v{T0}')
        A(f'v_mul_f32 v{T2}, v{T2}, v{LV+1}'); A(f'v_mul_f32 v{T3}, v{T3}, v{LV+1}')
        dpp_sum16([T2, T3])
        A(f'ds_write_b64 v{RW}, {vr(T2,2)} offset:{red}')
        A('s_waitcnt lgkmcnt(0)')
        A('s_barrier')
        A(f'ds_read_b128 {vr(Q4,4)}, v{RR} offset:{red}')
        A('s_waitcnt lgkmcnt(0)')
        A(f'v_pk_add_f32 {vr(T2,2)}, {vr(Q4,2)}, {vr(Q4+2,2)}')
        A(f'v_pk_mul_f32 {vr(T2,2)}, {vr(T2,2)}, {vr(LV,2)} op_sel_hi:[1,0]')
        g.nop(1)
        dpp_sum16([T2, T3])
        ln_stats(T2, T3, f's{sk}', mean_out, rstd_out)
    A(f'ds_write_b64 v{TID8}, {vr(X1,2)} offset:{X1V}')
    block_stats(X1, RED1, S_K1, T4, T5)
    for k in range(2): A(f'v_sub_f32 v{HH+k}, v{X1+k}, v{T4}')
    for k in range(2): rnd(HH+k, HH+k)
    for k in range(2): A(f'v_mul_f32 v{HH+k}, v{HH+k}, v{T5}')
    for k in range(2): rnd(HH+k, HH+k)
    for k in range(2): A(f'v_mul_f32 v{HH+k}, v{HH+k}, v{CB+k}')
    for k in range(2): rnd(HH+k, HH+k)
    for k in range(2): A(f'v_add_f32 v{HH+k}, v{HH+k}, v{SB+k}')
    for k in range(2): rnd(HH+k, HH+k)
    block_stats(HH, RED2, S_K2, T4, T5)
    stamp(7)
    for k in range(2): A(f'v_sub_f32 v{HH+k}, v{HH+k}, v{T4}')
    for k in range(2): rnd(HH+k, HH+k)
    for k in range(2): A(f'v_mul_f32 v{HH+k}, v{HH+k}, v{T5}')
    for k in range(2): rnd(HH+k, HH+k)
    KK = PA + 6; AD = PA + 8; YY = PA + 10
    for k in range(2): A(f'v_bfe_u32 v{KK+k}, v{HH+k}, 23, 8')
    for k in range(2): A(f'v_bfe_u32 v{AD+k}, v{HH+k}, 16, 7')
    for k in range(2): A(f'v_subrev_u32 v{KK+k}, {127+EMIN}, v{KK+k}')
    for k in range(2): A(f'v_lshrrev_b32 v{YY+k}, 31, v{HH+k}')
    A(f'v_cmp_le_u32 {sp(S_M)}, {NB}, v{KK}'); A(f'v_cmp_le_u32 {sp(S_M+2)}, {NB}, v{KK+1}')
    A(f's_cmp_eq_u32 s{S_ST0}, 0'); A('s_cbranch_scc1 L_E_nostore')
    for k in range(2): A(f'v_min_u32 v{KK+k}, {NB-1}, v{KK+k}')
    for k in range(2): A(f'v_mad_u32_u24 v{KK+k}, v{YY+k}, {NB}, v{KK+k}')
    A(f'v_cmp_le_u32 vcc, {RS}, v{KK}'); A(f'v_cmp_le_u32 {sp(S_A-1+1) if False else sp(66)}, {RS}, v{KK+1}')
    for k in range(2): A(f'v_lshl_add_u32 v{AD+k}, v{AD+k}, 5, v{KK+k}')
    for k in range(2): A(f'v_add_u32 v{YY+k}, {16-RS}, v{AD+k}')
    A(f'v_cndmask_b32 v{AD}, v{AD}, v{YY}, vcc'); A(f'v_cndmask_b32 v{AD+1}, v{AD+1}, v{YY+1}, {sp(66)}')
    for k in range(2): A(f'v_lshlrev_b32 v{AD+k}, 2, v{AD+k}')
    for k in range(2): A(f'ds_read_b32 v{YY+k}, v{AD+k} offset:{TBL}')
    A(f'v_lshrrev_b32 v{T0}, 1, v{TID8}')
    A('s_waitcnt lgkmcnt(0)')
    for k in range(2): rnd(YY+k, YY+k)
    for k in range(2): A(f'v_add_f32 v{YY+k}, v{YY+k}, v{V_HB}')
    for k in range(2): rnd(YY+k, YY+k)
    for k in range(2): A(f'v_mul_f32 v{YY+k}, v{YY+k}, v{GB+k}')
    for k in range(2): rnd(YY+k, YY+k)
    for k in range(2): A(f'v_add_f32 v{YY+k}, v{YY+k}, v{X1+k}')
    A(f'v_cvt_pk_bf16_f32 v{YY}, v{YY}, v{YY+1}')
    A(f's_andn2_b64 exec, {sp(S_SAVE)}, {sp(S_M)}'); A('s_cbranch_execz L_E_st1')
    A(f'global_store_short v{T0}, v{YY}, {sp(P_OUT)}')
    g.lab('L_E_st1')
    A(f's_andn2_b64 exec, {sp(S_SAVE)}, {sp(S_M+2)}'); A('s_cbranch_execz L_E_st2')
    A(f'global_store_short_d16_hi v{T0}, v{YY}, {sp(P_OUT)} offset:2')
    g.lab('L_E_st2')
    A('s_mov_b64 exec, -1')
    stamp(8)
    A('s_branch L_fin')
    g.lab('L_E_nostore')
    A(f's_and_b64 {sp(S_M)}, {sp(S_M)}, {sp(S_SAVE)}'); A(f's_and_b64 {sp(S_M+2)}, {sp(S_M+2)}, {sp(S_SAVE)}')
    A(f'ds_write_b64 v{TID8}, {vr(HH,2)} offset:{H2V}')
    for k in range(4): A(f'v_mov_b32 v{Q4+k}, s{S_M+k}')
    A(f's_lshl_b32 s{S_B}, s{S_WAVE}, 4'); A(f'v_mov_b32 v{T0}, s{S_B}')
    A('s_mov_b64 exec, 1')
    A(f'ds_write_b128 v{T0}, {vr(Q4,4)} offset:{MISS}')
    A('s_mov_b64 exec, -1')
    A('s_branch L_E_b3')
    g.lab('L_E_tb')
    A(f'v_subrev_u32 v{T5}, 320, v0')
    NG = 11
    GR = U
    A(f'v_lshlrev_b32 v{V_ADDR}, 4, v{T5}')
    A(f'v_lshlrev_b32 v{V_ADDR2}, 3, v{T5}')
    A(f'v_add_u32 v{T4}, {10*192*16}, v{V_ADDR}'); A(f'v_min_u32 v{T4}, {2047*16}, v{T4}')
    A(f'v_lshrrev_b32 v{T3}, 1, v{T4}')
    g.lab('L_E_tbpoll')
    for j in range(NG):
        A(f's_mov_b32 s{S_T}, {TB + (j*192*16 if j < 10 else 0)}')
        A(f'buffer_load_dwordx4 {vr(GR+4*j,4)}, v{V_ADDR if j < 10 else T4}, {sq(SRD_WS)}, s{S_T} offen sc1')
    A('s_waitcnt vmcnt(0)')
    tag_check(GR, NG, T0, T1)
    retry('L_E_tbpoll', 'L_E_tbok', sleep=4)
    g.lab('L_E_tbok')
    for j in range(10): A(f'ds_write_b64 v{V_ADDR2}, {vr(GR+4*j,2)} offset:{TBL + j*192*8}')
    A(f'ds_write_b64 v{T3}, {vr(GR+40,2)} offset:{TBL}')
    stamp(5)
    A('s_waitcnt lgkmcnt(0)')
    A('s_barrier'); A('s_barrier')
    A('s_branch L_fin')
    g.lab('L_E_b12')
    A(f'v_mov_b32 v{T0}, 0'); A(f'global_load_ushort v{V_HB}, v{T0}, {sp(P_B2)}')
    A('s_waitcnt vmcnt(0)')
    A(f'v_lshlrev_b32 v{V_HB}, 16, v{V_HB}')
    A('s_barrier'); A('s_barrier')
    g.lab('L_E_b3')
    A('s_waitcnt lgkmcnt(0)')
    A('s_barrier')
    MK = RAW + 24
    A(f'v_and_b32 v{T0}, 15, v{V_LANE}'); A(f'v_min_u32 v{T0}, 9, v{T0}'); A(f'v_lshlrev_b32 v{T0}, 3, v{T0}')
    A(f'ds_read_b64 {vr(MK,2)}, v{T0} offset:{MISS}')
    A(f's_mov_b32 s{S_G}, 0')
    A(f's_mov_b32 s{S_KS}, s{S_IDX}')
    A('s_waitcnt lgkmcnt(0)')
    g.lab('L_E_mk')
    A(f'v_readlane_b32 s{S_M}, v{MK}, s{S_G}'); A(f'v_readlane_b32 s{S_M+1}, v{MK+1}, s{S_G}')
    g.lab('L_E_mbit')
    A(f's_cmp_eq_u64 {sp(S_M)}, 0'); A('s_cbranch_scc1 L_E_mnext')
    A(f's_ff1_i32_b64 s{S_I}, {sp(S_M)}')
    A(f's_bitset0_b64 {sp(S_M)}, s{S_I}')
    A(f's_cmp_eq_u32 s{S_KS}, 0'); A('s_cbranch_scc1 L_E_mdo')
    A(f's_sub_u32 s{S_KS}, s{S_KS}, 1')
    A('s_branch L_E_mbit')
    g.lab('L_E_mdo')
    A(f's_mov_b32 s{S_KS}, {NE-1}')
    A(f's_lshr_b32 s{S_A}, s{S_G}, 1'); A(f's_lshl_b32 s{S_A}, s{S_A}, 6'); A(f's_add_u32 s{S_A}, s{S_A}, s{S_I}'); A(f's_lshl_b32 s{S_A}, s{S_A}, 1')
    A(f's_and_b32 s{S_B}, s{S_G}, 1'); A(f's_add_u32 s{S_A}, s{S_A}, s{S_B}'); A(f's_lshl_b32 s{S_GRP}, s{S_A}, 2')
    A(f'v_mov_b32 v{V_OPA}, s{S_GRP}')
    A(f'ds_read_b32 v{T2}, v{V_OPA} offset:{H2V}'); A(f'ds_read_b32 v{T4}, v{V_OPA} offset:{X1V}'); A(f'ds_read_b32 v{T5}, v{V_OPA} offset:{GBV}')
    A(f's_mov_b32 s{S_SC}, 1.0'); A(f'v_mov_b32 v{ACC}, 0'); A(f'v_mov_b32 v{ACC+1}, 0')
    A('s_waitcnt lgkmcnt(0)')
    A(f'v_readfirstlane_b32 s{S_A}, v{T2}')
    g.nop(2)
    t0_from(S_A)
    gelu_row(ACC)
    g.nop(3)
    wave_sum2(ACC, ACC+1, T0, T1)
    A(f's_lshl_b32 s{S_B}, s{S_WAVE}, 2'); A(f'v_mov_b32 v{T0}, s{S_B}')
    A(f'ds_write_b32 v{T0}, v{ACC} offset:{YRED}')
    A('s_waitcnt lgkmcnt(0)')
    A('s_barrier')
    A(f'v_mov_b32 v{T0}, 0')
    A(f'ds_read_b128 {vr(Z,4)}, v{T0} offset:{YRED}'); A(f'ds_read_b128 {vr(Z+4,4)}, v{T0} offset:{YRED+16}')
    A('s_waitcnt lgkmcnt(0)')
    A('s_barrier')
    A(f's_cmp_eq_u32 s{S_WAVE}, 0'); A('s_cbranch_scc0 L_E_mbit')
    for a, b in ((0, 1), (2, 3), (4, 5), (6, 7), (0, 2), (4, 6), (0, 4)): A(f'v_add_f32 v{Z+a}, v{Z+a}, v{Z+b}')
    rnd(Z, Z); A(f'v_add_f32 v{Z}, v{Z}, v{V_HB}'); rnd(Z, Z); A(f'v_mul_f32 v{Z}, v{Z}, v{T5}'); rnd(Z, Z); A(f'v_add_f32 v{Z}, v{Z}, v{T4}')
    A(f'v_cvt_pk_bf16_f32 v{Z}, v{Z}, v{Z}')
    A(f'v_lshrrev_b32 v{T0}, 1, v{V_OPA}')
    A('s_mov_b64 exec, 1')
    A(f'global_store_short v{T0}, v{Z}, {sp(P_OUT)}')
    A('s_mov_b64 exec, -1')
    A('s_branch L_E_mbit')
    g.lab('L_E_mnext')
    A(f's_add_u32 s{S_G}, s{S_G}, 1'); A(f's_cmp_lt_u32 s{S_G}, 10'); A('s_cbranch_scc1 L_E_mk')

    g.lab('L_fin_done')
    g.lab('L_fin')
    if stamps:
        stamp(10)
        A('s_waitcnt lgkmcnt(0)')
        A(f's_lshl_b32 s{S_A}, s2, 3'); A(f's_add_u32 s{S_A}, s{S_A}, s{S_WAVE}'); A(f's_lshl_b32 s{S_A}, s{S_A}, 7'); A(f's_add_u32 s{S_A}, s{S_A}, {STAMP}')
        A(f's_getreg_b32 s{S_B}, hwreg(HW_REG_HW_ID)'); A(f's_getreg_b32 s{S_C}, hwreg(HW_REG_XCC_ID)')
        for k in range(22): A(f'v_mov_b32 v{R0+k}, s{S_ST+k}')
        A(f'v_mov_b32 v{R0+22}, s{S_B}'); A(f'v_mov_b32 v{R0+23}, s{S_C}')
        A(f'v_mov_b32 v{T0}, 0')
        A('s_mov_b64 exec, 1')
        for k in range(5): A(f'buffer_store_dwordx4 {vr(R0+4*k,4)}, v{T0}, {sq(SRD_WS)}, s{S_A} offen offset:{16*k}')
        A(f'buffer_store_dwordx2 {vr(R0+20,2)}, v{T0}, {sq(SRD_WS)}, s{S_A} offen offset:80')
        A(f'buffer_store_dwordx2 {vr(R0+22,2)}, v{T0}, {sq(SRD_WS)}, s{S_A} offen offset:120')
    g.lab('L_end')
    A('s_endpgm')
    g.lab('L_codeend')
    T = ['.section .rodata,"a"', '.p2align 6', f'.amdhsa_kernel {NAME}_kernel', f'  .amdhsa_next_free_vgpr {NVGPR}', '  .amdhsa_next_free_sgpr 102',
         f'  .amdhsa_accum_offset {NVGPR}', '  .amdhsa_group_segment_fixed_size 0', '  .amdhsa_kernarg_size 120', '  .amdhsa_user_sgpr_count 2',
         '  .amdhsa_user_sgpr_kernarg_segment_ptr 1', '  .amdhsa_system_sgpr_workgroup_id_x 1', '  .amdhsa_float_denorm_mode_32 3', '.end_amdhsa_kernel']
    pre = [f'    s_mov_b64 s[{S_ST+2*k}:{S_ST+2*k+1}], 0' for k in range(11)] if stamps else []
    body = []
    for line in g.L:
        if line.strip() == 'CODE_PREFETCH':
            for j in range(3):
                body.append(f'    v_add_u32 v{T3}, {j*8192}, v{T2}')
                body.append(f'    v_min_u32 v{T3}, L_codeend-{NAME}_kernel-4, v{T3}')
                body.append(f'    global_load_dword v{V_ACC+16}, v{T3}, {sp(S_M)}')
        else: body.append(line)
    return '\n'.join(H + pre + body + T) + '\n'

if __name__ == '__main__':
    out = sys.argv[1]
    kw = {}
    for a in sys.argv[2:]:
        if a == 'stamps': kw['stamps'] = True
        else:
            k, v = a.split('='); kw[k] = int(v)
    open(out, 'w').write(build(**kw))
```

```python
import sys, struct
NAME = 'adaLN_cond__sliding_block_cached__mixer_token_mlp__decode'
def f2u(x): return struct.unpack('<I', struct.pack('<f', x))[0]
def fx(x): return hex(f2u(x))

H0T = 0x00000
H1 = 0x20000
H2O = 0x48000
ML = 0x68000
H3 = 0x6C000
HM = 0x75000
FLC = 0x7C000
FLS = 0x7C400
TB = 0x80000
DUMMY = 0x90000
STAMP = 0x8000000
VEC = 0x0000
SOP = 0x0200
WMAX = 0x0600; WSUM = 0x0640
CNT = 0x0680
OPART = 0x0800
APART = 0x2800
BPART = 0x1800
KLDS = 0x3000
TRED = 0x0000
RED1 = 0x0200; RED2 = 0x02B0
MISS = 0x0360
YRED = 0x03C0
H2V = 0x0400; X1V = 0x0D00; GBV = 0x1600
TBL = 0x2000
LDS_BYTES = 0x13000
SPIN = 1 << 16

S_WAVE, S_ST0, S_IDX = 3, 4, 5
S_E0, S_E1 = 6, 7
S_SC = 8
S_SAVE = 10
P_X, P_K, P_V, P_WQ, P_WO, P_BX, P_W1, P_B1, P_W2, P_B2, P_C, P_WM, P_OUT, P_DBG, P_WS = [16 + 2*i for i in range(15)]
S_K1, S_K2 = 14, 15
SRD_WS, SRD_M, SRD_M2 = 48, 52, 56
S_M = 60
S_T = 64
S_A, S_B, S_C, S_D, S_E, S_F = 65, 66, 67, 68, 69, 70
S_SPIN = 71
S_PLO, S_PHI = 72, 73
S_G, S_KS, S_I, S_GRP, S_L0, S_NT = 74, 75, 76, 77, 78, 79
S_ST = 80

def sp(r): return f's[{r}:{r+1}]'
def sq(r): return f's[{r}:{r+3}]'
def vr(r, n=1): return f'v{r}' if n == 1 else f'v[{r}:{r+n-1}]'

class Gen:
    def __init__(self): self.L = []
    def A(self, s): self.L.append('    ' + s)
    def lab(self, s): self.L.append(s + ':')
    def nop(self, n):
        while n > 0:
            k = min(n, 16); self.A(f's_nop {k-1}'); n -= k

def build(stamps=False, NB=13, EMIN=-10, NE=16, SLEEP=1, SPINV=SPIN, NOT=0, PK=1, GATE=1, ARB2=1, PERMFIRST=0, DSLEEP=1, ETP=3, QSL=0, HTP=2, TGATE=0, RS=11, AFIRST=0, ARAT=2, VH=8, WOG=1, TLOOP=0, PW=4, PW2=0, UNG=0, NOB0=0, TPRIO=1, EG=1, PERT=0):
    g = Gen(); A = g.A
    def stamp(k):
        if stamps:
            assert k < 11
            A(f's_memrealtime s[{S_ST+2*k}:{S_ST+2*k+1}]')
    V_LANE = 1; T0, T1, T2, T3, T4, T5 = 2, 3, 4, 5, 6, 7
    V_HB = 8; V_ADDR = 9; V_ADDR2 = 10; V_L16 = 11; V_L4 = 12; V_OPA = 13; V_EP = 14
    V_VEC = 16; V_ACC = 32; R0 = 64; R1 = 96; V_KA = 24
    NVGPR = 128
    DPP = 'row_mask:0xf bank_mask:0xf'

    def waitk():
        A('s_waitcnt lgkmcnt(0)'); stamp(1)
    def mk_srd(srd, p, n):
        A(f's_mov_b32 s{srd}, s{p}'); A(f's_mov_b32 s{srd+1}, s{p+1}'); A(f's_mov_b32 s{srd+2}, {hex(n)}'); A(f's_mov_b32 s{srd+3}, 0x00020000')
    def srd_ws(): mk_srd(SRD_WS, P_WS, 0x10000000)
    def lane_consts(l16=True, opa=False):
        if l16: A(f'v_lshlrev_b32 v{V_L16}, 4, v{V_LANE}')
        if opa:
            A(f'v_lshrrev_b32 v{T0}, 4, v{V_LANE}'); A(f'v_and_b32 v{T1}, 1, v{V_LANE}')
            A(f'v_lshlrev_b32 v{T0}, 5, v{T0}'); A(f'v_lshl_add_u32 v{V_OPA}, v{T1}, 4, v{T0}')
    def tile_loads_buf(dst, vaddr, srd, stride):
        for t in range(8):
            off = t * stride
            if off < 4096:
                A(f'buffer_load_dwordx4 {vr(dst+4*t,4)}, v{vaddr}, {sq(srd)}, 0 offen offset:{off} nt')
            else:
                A(f's_mov_b32 s{S_T}, {off}')
                A(f'buffer_load_dwordx4 {vr(dst+4*t,4)}, v{vaddr}, {sq(srd)}, s{S_T} offen nt')
    def tile_perm(src, dst, after=None):
        for tp in range(4):
            if after: after(tp)
            for q in range(4):
                a = src + 4*(2*tp) + q; b = src + 4*(2*tp+1) + q
                A(f'v_perm_b32 v{dst+4*(2*q)+tp}, v{b}, v{a}, s{S_PLO}')
                A(f'v_perm_b32 v{dst+4*(2*q+1)+tp}, v{b}, v{a}, s{S_PHI}')
    def tile_mfma(tr, vec, acc):
        for j in (0, 4, 1, 5, 2, 6, 3, 7):
            A(f'v_mfma_f32_16x16x32_bf16 {vr(acc+4*j,4)}, {vr(vec,4)}, {vr(tr+4*j,4)}, 0')
    def hb_combine(acc, out):
        g.nop(2)
        for k in range(4):
            A(f'v_add_f32_dpp v{out+k}, v{acc+4*k+1}, v{acc+4*k} row_ror:8 row_mask:0xf bank_mask:0x3')
            A(f'v_add_f32_dpp v{out+k}, v{acc+4*(4+k)}, v{acc+4*(4+k)+1} row_ror:8 row_mask:0xf bank_mask:0xc')
    def slot_addr(vdst):
        A(f'v_and_b32 v{T0}, 7, v{V_LANE}'); A(f'v_lshlrev_b32 v{T0}, 5, v{T0}')
        A(f'v_bfe_u32 v{T1}, v{V_LANE}, 3, 1'); A(f'v_lshl_add_u32 v{vdst}, v{T1}, 4, v{T0}')
    def hb_lane_off(vdst, stride):
        A(f'v_lshrrev_b32 v{T0}, 3, v{V_LANE}'); A(f'v_mul_u32_u24 v{T0}, {8*stride}, v{T0}')
        A(f'v_and_b32 v{T1}, 7, v{V_LANE}'); A(f'v_lshl_add_u32 v{vdst}, v{T1}, 4, v{T0}')
    def spin(ok):
        A(f's_sub_u32 s{S_SPIN}, s{S_SPIN}, 1'); A(f's_cmp_lt_i32 s{S_SPIN}, 0'); A(f's_cbranch_scc1 {ok}')
    def retry(loop, ok, sleep=SLEEP):
        A('s_cmp_eq_u64 vcc, 0'); A(f's_cbranch_scc1 {ok}')
        spin(ok)
        if sleep: A(f's_sleep {sleep}')
        A(f's_branch {loop}')
    def rnd(d, s): A(f'v_cvt_pk_bf16_f32 v{d}, 0, v{s}')
    def san(r): A(f'v_min_u32 v{r}, 0xfffffffe, v{r}')
    def sent_check(regs, t, t2=None):
        regs = list(regs)
        if t2 is not None and len(regs) >= 8:
            h = len(regs) // 2
            chains = [(t, regs[:h]), (t2, regs[h:])]
        else: chains = [(t, regs)]
        ops = []
        for tt, rs in chains:
            o = [f'v_max3_u32 v{tt}, v{rs[0]}, v{rs[1]}, v{rs[2]}']
            rest = rs[3:]
            while len(rest) >= 2:
                o.append(f'v_max3_u32 v{tt}, v{tt}, v{rest[0]}, v{rest[1]}'); rest = rest[2:]
            if rest: o.append(f'v_max_u32 v{tt}, v{tt}, v{rest[0]}')
            ops.append(o)
        for i in range(max(len(o) for o in ops)):
            for o in ops:
                if i < len(o): A(o[i])
        if len(chains) == 2: A(f'v_max_u32 v{t}, v{t}, v{t2}')
        A(f'v_cmp_eq_u32 vcc, -1, v{t}')
    def tag_check(base, n, t, t2):
        A(f'v_xor_b32 v{t}, s{S_E0}, v{base+2}'); A(f'v_xor_b32 v{t2}, s{S_E1}, v{base+3}')
        for r in range(1, n):
            A(f'v_bitop3_b32 v{t}, v{t}, v{base+4*r+2}, s{S_E0} bitop3:0xf6'); A(f'v_bitop3_b32 v{t2}, v{t2}, v{base+4*r+3}, s{S_E1} bitop3:0xf6')
        A(f'v_or_b32 v{t}, v{t}, v{t2}'); A(f'v_cmp_ne_u32 vcc, 0, v{t}')
    def epoch_load(v=V_EP):
        A(f'v_mov_b32 v{T0}, 0')
        A(f'global_load_dwordx2 {vr(v,2)}, v{T0}, {sp(P_DBG)} sc1')
    def epoch_take(name, v=V_EP, sleep=0):
        g.lab(f'L_{name}_ep')
        A(f'v_readfirstlane_b32 s{S_E1}, v{v+1}'); A(f'v_readfirstlane_b32 s{S_E0}, v{v}')
        A(f's_cmp_lg_u32 s{S_E1}, 0'); A(f's_cbranch_scc1 L_{name}_epok')
        spin(f'L_{name}_epok')
        if sleep: A(f's_sleep {sleep}')
        epoch_load(v)
        A('s_waitcnt vmcnt(0)')
        A(f's_branch L_{name}_ep')
        g.lab(f'L_{name}_epok')
    def dpp_sum16(regs):
        regs = list(regs)
        for sh in (1, 2, 4, 8):
            if len(regs) < 3: g.nop(3 - len(regs))
            for r in regs: A(f'v_add_f32_dpp v{r}, v{r}, v{r} row_ror:{sh} {DPP}')
    def wave_sum2(a, b, t0, t1):
        dpp_sum16([a, b])
        for sw in ('v_permlane16_swap_b32', 'v_permlane32_swap_b32'):
            A(f'v_mov_b32 v{t0}, v{a}'); A(f'v_mov_b32 v{t1}, v{b}'); g.nop(1)
            A(f'{sw} v{a}, v{t0}'); A(f'{sw} v{b}, v{t1}'); g.nop(1)
            A(f'v_add_f32 v{a}, v{a}, v{t0}'); A(f'v_add_f32 v{b}, v{b}, v{t1}')
    def ln_stats(s1, s2, kreg, mean_out, rstd_out):
        A(f'v_mul_f32 v{s1}, {fx(1.0/576)}, v{s1}'); A(f'v_mul_f32 v{s2}, {fx(1.0/576)}, v{s2}')
        A(f'v_fma_f32 v{s2}, -v{s1}, v{s1}, v{s2}'); A(f'v_add_f32 v{mean_out}, {kreg}, v{s1}')
        A(f'v_max_f32 v{s2}, 0, v{s2}')
        rnd(s2, s2); rnd(mean_out, mean_out)
        A(f'v_add_f32 v{s2}, {fx(1e-5)}, v{s2}'); rnd(s2, s2)
        A(f'v_sqrt_f32 v{s2}, v{s2}'); g.nop(1); rnd(s2, s2)
        A(f'v_rcp_f32 v{rstd_out}, v{s2}'); g.nop(1)
    def silu_operand(vdst, vc):
        A(f'v_lshlrev_b32 v{vc}, 16, v{vc}')
        A(f'v_mul_f32 v{T0}, {fx(-1.4426950408889634)}, v{vc}')
        A(f'v_exp_f32 v{T0}, v{T0}'); g.nop(1)
        A(f'v_add_f32 v{T0}, 1.0, v{T0}'); A(f'v_rcp_f32 v{T0}, v{T0}'); g.nop(1)
        A(f'v_mul_f32 v{T0}, v{vc}, v{T0}')
        A(f'v_cvt_pk_bf16_f32 v{T0}, v{T0}, v{T0}')
        A(f's_lshl_b32 s{S_A}, s{S_WAVE}, 7'); A(f's_add_u32 s{S_A}, s{S_A}, {SOP}')
        A(f'v_lshl_add_u32 v{T1}, v{V_LANE}, 1, s{S_A}')
        A(f'ds_write_b16 v{T1}, v{T0}')
        A(f'v_add_u32 v{T1}, s{S_A}, v{V_OPA}')
        A(f'ds_read_b128 {vr(vdst,4)}, v{T1}')
    def xj():
        A(f's_and_b32 s{S_L0}, s{S_IDX}, 7'); A(f's_lshr_b32 s{S_NT}, s{S_IDX}, 3')
    def task_b(dst):
        A(f's_cmp_eq_u32 s{S_L0}, 7'); A(f's_cselect_b32 s{S_A}, 12, 14'); A(f's_cselect_b32 s{S_B}, 3, 2')
        A(f's_add_u32 s{dst}, s{S_NT}, s{S_B}')
        A(f's_cmp_ge_u32 s{S_NT}, s{S_A}'); A(f's_cselect_b32 s{dst}, s{dst}, 255')
        A(f's_cmp_lt_u32 s{dst}, 18'); A(f's_cselect_b32 s{dst}, s{dst}, 255')
    def task_gi(t):
        A(f's_cmp_ge_u32 s{t}, 9'); A(f's_cselect_b32 s{S_A}, 9, 0'); A(f's_cselect_b32 s{S_B}, 8, 0')
        A(f's_sub_u32 s{S_I}, s{t}, s{S_A}'); A(f's_add_u32 s{S_GRP}, s{S_L0}, s{S_B}')
    def h3_slot(dst):
        A(f's_mul_i32 s{dst}, s{S_GRP}, 2304'); A(f's_lshl_b32 s{S_T}, s{S_I}, 8'); A(f's_add_u32 s{dst}, s{dst}, s{S_T}'); A(f's_add_u32 s{dst}, s{dst}, {H3}')
    def ar_params(s_rho, s_lcr, s_a):
        A(f's_mul_i32 s{s_a}, s{S_L0}, 14'); A(f's_add_u32 s{s_a}, s{s_a}, s{S_NT}')
        A(f's_cmp_lt_u32 s{S_NT}, 14'); A(f's_cselect_b32 s{s_a}, s{s_a}, 255')
        A(f's_mul_i32 s{s_rho}, s{s_a}, 1821'); A(f's_lshr_b32 s{s_rho}, s{s_rho}, 16')
        A(f's_mul_i32 s{s_lcr}, s{s_rho}, 36'); A(f's_sub_u32 s{s_lcr}, s{s_a}, s{s_lcr}')
    def hm_slot(dst, s_rho, s_lcr):
        A(f's_mul_i32 s{dst}, s{s_rho}, 9216'); A(f's_lshl_b32 s{S_T}, s{s_lcr}, 8'); A(f's_add_u32 s{dst}, s{dst}, s{S_T}'); A(f's_add_u32 s{dst}, s{dst}, {HM}')
    def last_arriver(cnt_off, n_expr, out_label):
        A(f'v_mov_b32 v{T0}, {CNT+cnt_off}'); A(f'v_mov_b32 v{T1}, 1')
        A('s_mov_b64 exec, 1')
        A(f'ds_add_rtn_u32 v{T1}, v{T0}, v{T1}')
        A('s_mov_b64 exec, -1')
        A('s_waitcnt lgkmcnt(0)')
        A(f'v_readfirstlane_b32 s{S_T}, v{T1}')
        A(f's_add_u32 s{S_T}, s{S_T}, 1')
        A(f's_cmp_eq_u32 s{S_T}, {n_expr}'); A(f's_cbranch_scc0 {out_label}')
    def store16(data, vaddr, soff, mask='0xffff', off=0):
        A(f's_mov_b64 exec, {mask}')
        A(f'buffer_store_dwordx4 {vr(data,4)}, v{vaddr}, {sq(SRD_WS)}, s{soff} offen offset:{off} sc1')
        A('s_mov_b64 exec, -1')

    H = [f'; @launch grid=(512,1,1) block=(512,1,1) lds={LDS_BYTES}', '.amdgcn_target "amdgcn-amd-amdhsa--gfx950"', '.text',
         f'.globl {NAME}_kernel', '.p2align 8', f'.type {NAME}_kernel,@function', f'{NAME}_kernel:']
    stamp(0)
    A('s_cmp_ge_u32 s2, 512'); A('s_cbranch_scc1 L_end')
    A('s_load_dwordx16 s[16:31], s[0:1], 0')
    A('s_load_dwordx8 s[32:39], s[0:1], 64')
    A('s_load_dwordx4 s[40:43], s[0:1], 96')
    A('s_load_dwordx2 s[44:45], s[0:1], 112')
    A(f'v_lshrrev_b32 v{T0}, 6, v0')
    A(f'v_and_b32 v{V_LANE}, 63, v0')
    A(f'v_readfirstlane_b32 s{S_WAVE}, v{T0}')
    A(f's_mov_b32 s{S_SPIN}, {SPINV}')
    A(f's_cmp_lt_u32 s2, 16'); A(f's_cselect_b32 s{S_A}, s{S_WAVE}, 0'); A(f's_cmp_lt_u32 s{S_A}, 5'); A('s_cbranch_scc1 L_nopf')
    A(f's_getpc_b64 {sp(S_M)}')
    g.lab('L_pc')
    A(f's_sub_u32 s{S_A}, s{S_A}, 5'); A(f's_lshl_b32 s{S_A}, s{S_A}, 13')
    A(f'v_lshl_add_u32 v{T2}, v{V_LANE}, 7, s{S_A}')
    A(f'v_min_u32 v{T2}, L_codeend-L_pc-4, v{T2}')
    A(f'global_load_dword v{R1+31}, v{T2}, {sp(S_M)}')
    g.lab('L_nopf')
    A('s_cmp_ge_u32 s2, 256'); A('s_cbranch_scc1 L_end' if NOT else 's_cbranch_scc1 L_T')
    A('s_setprio 2')
    A(f's_lshr_b32 s{S_IDX}, s2, 4'); A(f's_lshl_b32 s{S_IDX}, s{S_IDX}, 3'); A(f's_and_b32 s{S_A}, s2, 7'); A(f's_or_b32 s{S_IDX}, s{S_IDX}, s{S_A}')
    A(f's_mov_b32 s{S_PLO}, 0x05040100'); A(f's_mov_b32 s{S_PHI}, 0x07060302')
    A('s_bitcmp1_b32 s2, 3'); A('s_cbranch_scc1 L_S')
    A(f's_cmp_ge_u32 s{S_WAVE}, 4'); A('s_cbranch_scc1 L_CB')
    A(f's_cmp_eq_u32 s{S_WAVE}, 0'); A('s_cbranch_scc0 L_CA')
    A(f's_cmp_lt_u32 s2, 8'); A('s_cbranch_scc0 L_CB')
    A(f's_memrealtime {sp(S_M+2)}')
    A(f'v_mov_b32 v{V_VEC+2}, 0'); A(f'v_mov_b32 v{V_VEC+3}, 0')
    A('s_waitcnt lgkmcnt(0)')
    A(f's_or_b32 s{S_M+3}, s{S_M+3}, 0x80000000')
    A(f'v_mov_b32 v{V_VEC}, s{S_M+2}'); A(f'v_mov_b32 v{V_VEC+1}, s{S_M+3}')
    A('s_mov_b64 exec, 1')
    A(f'global_atomic_cmpswap_x2 v{V_VEC+2}, {vr(V_VEC,4)}, {sp(P_DBG)} sc1')
    A('s_mov_b64 exec, -1')
    A('s_branch L_CB')

    g.lab('L_CA')
    A(f's_sub_u32 s{S_F}, s{S_WAVE}, 1')
    xj()
    A(f's_lshl_b32 s{S_A}, s{S_L0}, 3'); A(f's_and_b32 s{S_B}, s{S_NT}, 7'); A(f's_add_u32 s{S_A}, s{S_A}, s{S_B}')
    A(f's_cmp_ge_u32 s{S_NT}, 8'); A(f's_cselect_b32 s{S_G}, s{S_A}, 64')
    A(f's_mul_i32 s{S_C}, s{S_G}, 3641'); A(f's_lshr_b32 s{S_C}, s{S_C}, 16')
    A(f's_mul_i32 s{S_A}, s{S_C}, 18'); A(f's_sub_u32 s{S_D}, s{S_G}, s{S_A}')
    hb_lane_off(V_ADDR, 6912)
    lane_consts(l16=True, opa=True)
    slot_addr(V_ADDR2)
    A(f's_lshl_b32 s{S_B}, s{S_F}, 8'); A(f's_add_u32 s{S_B}, s{S_B}, {APART}'); A(f'v_add_u32 v{V_ADDR2}, s{S_B}, v{V_ADDR2}')
    waitk()
    mk_srd(SRD_M, P_WM, 576*3456*2)
    def a_task(name, crit):
        A(f's_mul_i32 s{S_E}, s{S_C}, 3'); A(f's_add_u32 s{S_E}, s{S_E}, s{S_F}')
        A(f's_lshl_b32 s{S_A}, s{S_E}, 7')
        A(f'v_lshl_add_u32 v{T2}, v{V_LANE}, 1, s{S_A}')
        A(f'global_load_ushort v{T5}, v{T2}, {sp(P_C)}')
        A(f's_mul_i32 s{S_A}, s{S_E}, {64*6912}'); A(f's_lshl_b32 s{S_B}, s{S_D}, 7'); A(f's_add_u32 s{S_A}, s{S_A}, s{S_B}')
        A(f'v_add_u32 v{T2}, s{S_A}, v{V_ADDR}')
        tile_loads_buf(R0, T2, SRD_M, 6912)
        ex = 0
        if crit:
            srd_ws()
            A('s_barrier')
            A(f's_mul_i32 s{S_M}, s{S_D}, 3'); A(f's_add_u32 s{S_M}, s{S_M}, s{S_C}'); A(f's_lshl_b32 s{S_M}, s{S_M}, 9')
        A('s_waitcnt vmcnt(8)')
        silu_operand(V_VEC, T5)
        def aw(tp):
            A(f's_waitcnt vmcnt({6-2*tp})')
            if crit and tp == ETP:
                A('s_waitcnt lgkmcnt(0)')
                A(f's_load_dwordx2 {sp(S_E0)}, {sp(P_DBG)}, 0')
        tile_perm(R0, R1, after=aw)
        if not crit or ETP > 3: A('s_waitcnt lgkmcnt(0)')
        stamp(7 if crit else 5)
        tile_mfma(R1, V_VEC, V_ACC)
        hb_combine(V_ACC, V_VEC+4)
        A('s_mov_b64 exec, 0xffff')
        A(f'ds_write_b128 v{V_ADDR2}, {vr(V_VEC+4,4)} offset:{0 if crit else 768}')
        A('s_mov_b64 exec, -1')
        last_arriver(4 if crit else 8, 3, f'L_{name}_done')
        if crit:
            A(f'v_lshlrev_b32 v{T2}, 3, v{V_LANE}')
            for w in range(3): A(f'ds_read_b64 {vr(R0+4*w,2)}, v{T2} offset:{APART+256*w}')
            A(f's_cmp_lg_u32 s{S_E1}, 0'); A(f's_cbranch_scc1 L_{name}_epok')
            A(f's_load_dwordx2 {sp(S_E0)}, {sp(P_DBG)}, 0 glc'); A('s_waitcnt lgkmcnt(0)')
            A(f's_cmp_lg_u32 s{S_E1}, 0'); A(f's_cbranch_scc1 L_{name}_epok')
            epoch_load()
            A('s_waitcnt vmcnt(0)')
            epoch_take(name)
            stamp(8)
            A('s_waitcnt lgkmcnt(0)')
            A(f'v_pk_add_f32 {vr(R0,2)}, {vr(R0,2)}, {vr(R0+4,2)}'); A(f'v_pk_add_f32 {vr(R0,2)}, {vr(R0,2)}, {vr(R0+8,2)}')
            A(f'v_mov_b32 v{R0+2}, s{S_E0}'); A(f'v_mov_b32 v{R0+3}, s{S_E1}')
            A('s_mov_b32 exec_hi, 0')
            A(f'buffer_store_dwordx4 {vr(R0,4)}, v{V_L16}, {sq(SRD_WS)}, s{S_M} offen sc1')
            A('s_mov_b64 exec, -1')
            stamp(2)
        else:
            for w in range(3): A(f'ds_read_b128 {vr(R0+4*w,4)}, v{V_L16} offset:{APART+768+256*w}')
            A('s_waitcnt lgkmcnt(0)')
            for k in (0, 2): A(f'v_pk_add_f32 {vr(R0+k,2)}, {vr(R0+k,2)}, {vr(R0+4+k,2)}')
            for k in (0, 2): A(f'v_pk_add_f32 {vr(R0+k,2)}, {vr(R0+k,2)}, {vr(R0+8+k,2)}')
            for k in range(4): san(R0+k)
            store16(R0, V_L16, S_M+1)
            stamp(6)
    A(f's_cmp_lt_u32 s{S_G}, 54'); A('s_cbranch_scc0 L_CAc_none')
    a_task('CAc', True)
    g.lab('L_CAc_done')
    A('s_branch L_CAc_done2')
    g.lab('L_CAc_none')
    A('s_barrier')
    g.lab('L_CAc_done2')
    srd_ws()
    A(f's_cmp_eq_u32 s{S_IDX}, 127'); A('s_cbranch_scc1 L_E0')
    epoch_load()
    ar_params(S_C, S_D, S_G)
    hm_slot(S_M+1, S_C, S_D)
    A(f's_add_u32 s{S_D}, s{S_D}, 18')
    task_b(S_KS)
    A(f's_cmp_eq_u32 s{S_WAVE}, 1'); A('s_cbranch_scc0 L_CA_b2')
    for k in range(4): A(f'v_mov_b32 v{V_ACC+k}, -1')
    A(f's_lshl_b32 s{S_M}, s{S_IDX}, 8'); A(f's_add_u32 s{S_M}, s{S_M}, {DUMMY}')
    A('s_mov_b64 exec, 0xffff')
    task_gi(S_NT); h3_slot(S_M+3)
    A(f'buffer_store_dwordx4 {vr(V_ACC,4)}, v{V_L16}, {sq(SRD_WS)}, s{S_M+3} offen sc1')
    task_gi(S_KS); h3_slot(S_M+3)
    A(f's_cmp_lt_u32 s{S_KS}, 18'); A(f's_cselect_b32 s{S_B}, s{S_M+3}, s{S_M}')
    A(f'buffer_store_dwordx4 {vr(V_ACC,4)}, v{V_L16}, {sq(SRD_WS)}, s{S_B} offen sc1')
    A(f's_cmp_lt_u32 s{S_G}, 108'); A(f's_cselect_b32 s{S_B}, s{S_M+1}, s{S_M}')
    A(f'buffer_store_dwordx4 {vr(V_ACC,4)}, v{V_L16}, {sq(SRD_WS)}, s{S_B} offen sc1')
    A('s_mov_b64 exec, -1')
    A(f's_lshl_b32 s{S_M+2}, s{S_IDX}, 3'); A(f's_add_u32 s{S_M+2}, s{S_M+2}, {FLC}')
    A('s_waitcnt vmcnt(0)')
    epoch_take('CA1', sleep=2)
    A('s_mov_b64 exec, 1')
    A(f'buffer_store_dwordx2 {vr(V_EP,2)}, v{V_L16}, {sq(SRD_WS)}, s{S_M+2} offen sc1')
    A('s_mov_b64 exec, -1')
    A('s_branch L_CA_b1')
    g.lab('L_CA_b2')
    A('s_waitcnt vmcnt(0)')
    epoch_take('CA2', sleep=2)
    g.lab('L_CA_b1')
    A('s_barrier')
    A(f's_cmp_lt_u32 s{S_KS}, 18'); A('s_cbranch_scc1 L_D')
    A(f's_cmp_lt_u32 s{S_G}, 108'); A('s_cbranch_scc0 L_fin')
    a_task('fin', False)
    A('s_branch L_fin')

    g.lab('L_CB')
    xj()
    A(f's_add_u32 s{S_E}, s{S_WAVE}, 4'); A(f's_and_b32 s{S_E}, s{S_E}, 7')
    A(f's_lshr_b32 s{S_G}, s{S_NT}, 3'); A(f's_sub_u32 s{S_KS}, 5, s{S_G}')
    A(f's_lshl_b32 s{S_C}, s{S_G}, 11')
    A(f's_mul_i32 s{S_G}, s{S_G}, 5'); A(f's_add_u32 s{S_G}, s{S_G}, s{S_E}')
    hb_lane_off(V_ADDR, 8192)
    A(f's_and_b32 s{S_B}, s{S_NT}, 1'); A(f's_lshl_b32 s{S_B}, s{S_B}, 3'); A(f's_add_u32 s{S_B}, s{S_B}, s{S_L0}'); A(f's_lshl_b32 s{S_B}, s{S_B}, 2')
    A(f's_bfe_u32 s{S_D}, s{S_NT}, 0x20001'); A(f's_add_u32 s{S_B}, s{S_B}, s{S_D}')
    A(f's_lshl_b32 s{S_A}, s{S_G}, 19'); A(f's_lshl_b32 s{S_T}, s{S_B}, 7'); A(f's_add_u32 s{S_A}, s{S_A}, s{S_T}')
    A(f's_lshr_b32 s{S_T}, s{S_B}, 2'); A(f's_lshl_b32 s{S_T}, s{S_T}, 12'); A(f's_add_u32 s{S_C}, s{S_C}, s{S_T}'); A(f's_lshl_b32 s{S_T}, s{S_D}, 9'); A(f's_add_u32 s{S_C}, s{S_C}, s{S_T}'); A(f's_add_u32 s{S_C}, s{S_C}, {H1}')
    A(f'v_add_u32 v{V_ADDR}, s{S_A}, v{V_ADDR}')
    lane_consts(l16=True, opa=True)
    XR = V_ACC
    A(f'v_and_b32 v{T0}, 31, v{V_LANE}'); A(f'v_lshlrev_b32 v{V_HB}, 2, v{T0}')
    A(f's_lshl_b32 s{S_A}, s{S_G}, 7'); A(f'v_add_u32 v{T3}, s{S_A}, v{V_HB}')
    A(f's_cmp_eq_u32 s{S_WAVE}, 0'); A('s_cbranch_scc0 L_CB_b0')
    A(f'v_mov_b32 v{T4}, 0'); A(f'v_mov_b32 v{T5}, 0'); A(f'v_mov_b32 v{T2}, {CNT}')
    A(f'ds_write_b64 v{T2}, {vr(T4,2)}'); A(f'ds_write_b64 v{T2}, {vr(T4,2)} offset:8'); A(f'ds_write_b32 v{T2}, v{T4} offset:16')
    A(f'v_lshlrev_b32 v{T2}, 2, v{V_LANE}'); A(f'ds_write_b32 v{T2}, v{T4} offset:{BPART+1024}')
    g.lab('L_CB_b0')
    waitk()
    A('s_barrier')
    A(f's_cmp_lt_u32 s{S_E}, s{S_KS}'); A('s_cbranch_scc0 L_CB_noB')
    mk_srd(SRD_M, P_WQ, 576*4096*2)
    if EG:
        epoch_load()
        A(f'global_load_dwordx4 {vr(XR+12,4)}, v{V_L16}, {sp(P_X)}')
        A(f'global_load_dword v{XR+8}, v{V_HB}, {sp(P_X)} offset:1024')
        A(f'global_load_dword v{XR+10}, v{T3}, {sp(P_X)}')
        A('s_waitcnt vmcnt(3)')
        epoch_take('CBg', sleep=1)
        tile_loads_buf(R0, V_ADDR, SRD_M, 8192)
    else:
        tile_loads_buf(R0, V_ADDR, SRD_M, 8192)
        epoch_load()
        A(f'global_load_dwordx4 {vr(XR+12,4)}, v{V_L16}, {sp(P_X)}')
        A(f'global_load_dword v{XR+8}, v{V_HB}, {sp(P_X)} offset:1024')
        A(f'global_load_dword v{XR+10}, v{T3}, {sp(P_X)}')
    g.lab('L_CB_noB')
    stamp(2)
    srd_ws()
    slot_addr(V_L4)
    A(f's_lshl_b32 s{S_B}, s{S_E}, 8'); A(f'v_add_u32 v{V_L4}, s{S_B}, v{V_L4}')
    A(f's_cmp_lt_u32 s{S_E}, s{S_KS}'); A('s_cbranch_scc0 L_CB_noB2')
    P0 = V_ACC + 16
    A(f'v_lshrrev_b32 v{T1}, 5, v{V_LANE}'); A(f'v_mul_u32_u24 v{T1}, {9*3*512}, v{T1}'); A(f'v_lshl_add_u32 v{V_VEC+12}, v{V_HB}, 2, v{T1}')
    A(f's_mul_i32 s{S_K2}, s{S_G}, {3*512}')
    A(f's_lshl_b32 s{S_A}, s{S_WAVE}, 7'); A(f's_add_u32 s{S_A}, s{S_A}, {SOP}')
    A(f'v_add_u32 v{V_HB}, s{S_A}, v{V_HB}'); A(f'v_add_u32 v{V_VEC+13}, s{S_A}, v{V_OPA}')
    def h0_loads():
        for r in range(3): A(f'buffer_load_dwordx4 {vr(P0+4*r,4)}, v{V_VEC+12}, {sq(SRD_WS)}, s{S_K2} offen offset:{512*r} sc1')
    def ln_x():
        for k in range(4):
            A(f'v_lshlrev_b32 v{XR+2*k}, 16, v{XR+12+k}'); A(f'v_and_b32 v{XR+2*k+1}, 0xffff0000, v{XR+12+k}')
        A(f'v_readfirstlane_b32 s{S_K1}, v{XR}')
        A(f'v_and_b32 v{XR+9}, 0xffff0000, v{XR+8}'); A(f'v_lshlrev_b32 v{XR+8}, 16, v{XR+8}')
        A(f'v_and_b32 v{XR+11}, 0xffff0000, v{XR+10}'); A(f'v_lshlrev_b32 v{XR+10}, 16, v{XR+10}')
        for k in range(10): A(f'v_subrev_f32 v{XR+k}, s{S_K1}, v{XR+k}')
        A('s_mov_b32 exec_lo, 0'); A(f'v_mov_b32 v{XR+8}, 0'); A(f'v_mov_b32 v{XR+9}, 0'); A('s_mov_b32 exec_lo, -1')
        A(f'v_mov_b32 v{T2}, v{XR}'); A(f'v_mul_f32 v{T3}, v{XR}, v{XR}')
        for k in range(1, 10):
            A(f'v_add_f32 v{T2}, v{T2}, v{XR+k}'); A(f'v_fmac_f32 v{T3}, v{XR+k}, v{XR+k}')
        wave_sum2(T2, T3, T0, T1)
        ln_stats(T2, T3, f's{S_K1}', T4, T5)
        for k in (10, 11): A(f'v_sub_f32 v{XR+k}, v{XR+k}, v{T4}')
        for k in (10, 11): rnd(XR+k, XR+k)
        for k in (10, 11): A(f'v_mul_f32 v{XR+k}, v{XR+k}, v{T5}')
        for k in (10, 11): rnd(XR+k, XR+k)
    def bw(tp):
        A(f's_waitcnt vmcnt({(6 if EG else 10)-2*tp+(3 if tp > HTP else 0)})')
        if tp == HTP: h0_loads()
    if EG:
        A('s_waitcnt vmcnt(8)')
        ln_x()
        tile_perm(R0, R1, after=bw)
        stamp(3)
    else:
        tile_perm(R0, R1, after=bw)
        A('s_waitcnt vmcnt(3)')
        stamp(3)
        epoch_take('CB')
        ln_x()
    A(f'v_mov_b32 v{V_VEC+10}, s{S_E0}'); A(f'v_mov_b32 v{V_VEC+11}, s{S_E1}')
    g.lab('L_CB_p0')
    A('s_waitcnt vmcnt(0)')
    tag_check(P0, 3, T2, T3)
    A('s_cmp_eq_u64 vcc, 0'); A('s_cbranch_scc1 L_CB_ok0')
    spin('L_CB_ok0')
    if SLEEP: A(f's_sleep {SLEEP}')
    h0_loads()
    A('s_branch L_CB_p0')
    g.lab('L_CB_ok0')
    stamp(9)
    A(f'v_pk_add_f32 {vr(P0,2)}, {vr(P0,2)}, {vr(P0+4,2)}'); A(f'v_pk_add_f32 {vr(P0,2)}, {vr(P0,2)}, {vr(P0+8,2)}')
    rnd(P0, P0); rnd(P0+1, P0+1)
    A(f'v_mov_b32 v{P0+4}, v{P0}'); A(f'v_mov_b32 v{P0+5}, v{P0+1}'); g.nop(1)
    A(f'v_permlane32_swap_b32 v{P0}, v{P0+4}'); A(f'v_permlane32_swap_b32 v{P0+1}, v{P0+5}')
    g.nop(1)
    A(f'v_add_f32 v{P0+4}, 1.0, v{P0+4}'); A(f'v_add_f32 v{P0+5}, 1.0, v{P0+5}')
    rnd(P0+4, P0+4); rnd(P0+5, P0+5)
    A(f'v_mul_f32 v{P0+4}, v{P0+4}, v{XR+10}'); A(f'v_mul_f32 v{P0+5}, v{P0+5}, v{XR+11}')
    rnd(P0+4, P0+4); rnd(P0+5, P0+5)
    A(f'v_add_f32 v{P0+4}, v{P0+4}, v{P0}'); A(f'v_add_f32 v{P0+5}, v{P0+5}, v{P0+1}')
    A(f'v_cvt_pk_bf16_f32 v{T2}, v{P0+4}, v{P0+5}')
    A(f'ds_write_b32 v{V_HB}, v{T2}')
    A(f'ds_read_b128 {vr(V_VEC,4)}, v{V_VEC+13}')
    A(f'v_lshlrev_b32 v{T2}, 3, v{V_LANE}')
    A('s_waitcnt lgkmcnt(0)')
    tile_mfma(R1, V_VEC, V_ACC)
    hb_combine(V_ACC, V_VEC+4)
    A('s_mov_b64 exec, 0xffff')
    A(f'ds_write_b128 v{V_L4}, {vr(V_VEC+4,4)} offset:{BPART}')
    A('s_mov_b64 exec, -1')
    last_arriver(12, f's{S_KS}', 'L_CB_D')
    for w in range(5): A(f'ds_read_b64 {vr(V_ACC+2*w,2)}, v{T2} offset:{BPART+256*w}')
    A('s_waitcnt lgkmcnt(0)')
    A(f'v_pk_add_f32 {vr(V_ACC,2)}, {vr(V_ACC,2)}, {vr(V_ACC+2,2)}'); A(f'v_pk_add_f32 {vr(V_ACC+4,2)}, {vr(V_ACC+4,2)}, {vr(V_ACC+6,2)}')
    A(f'v_pk_add_f32 {vr(V_ACC,2)}, {vr(V_ACC,2)}, {vr(V_ACC+8,2)}')
    A(f'v_pk_add_f32 {vr(V_VEC+8,2)}, {vr(V_ACC,2)}, {vr(V_ACC+4,2)}')
    A('s_mov_b32 exec_hi, 0')
    A(f'buffer_store_dwordx4 {vr(V_VEC+8,4)}, v{V_L16}, {sq(SRD_WS)}, s{S_C} offen sc1')
    A('s_mov_b64 exec, -1')
    stamp(4)
    A('s_branch L_CB_D')
    g.lab('L_CB_noB2')
    epoch_load()
    A('s_waitcnt vmcnt(0)')
    epoch_take('CB2', sleep=2)
    g.lab('L_CB_D')
    A(f's_cmp_eq_u32 s{S_IDX}, 127'); A('s_cbranch_scc1 L_E0b')
    A(f's_mov_b32 s{S_KS}, s{S_NT}')
    A(f's_cmp_eq_u32 s{S_WAVE}, 0'); A('s_cbranch_scc0 L_CB_t')
    task_b(S_KS)
    g.lab('L_CB_t')
    A('s_barrier')
    A(f's_cmp_lt_u32 s{S_KS}, 18'); A('s_cbranch_scc0 L_fin')
    g.lab('L_D')
    task_gi(S_KS)
    A(f's_and_b32 s{S_E}, s{S_WAVE}, 3'); A(f's_lshl_b32 s{S_F}, s{S_GRP}, 2'); A(f's_add_u32 s{S_F}, s{S_F}, s{S_E}')
    mk_srd(SRD_M2, P_WO, 4096*576*2)
    hb_lane_off(V_ADDR2, 1152)
    A(f's_mul_i32 s{S_A}, s{S_F}, {64*1152}'); A(f's_lshl_b32 s{S_B}, s{S_I}, 7'); A(f's_add_u32 s{S_A}, s{S_A}, s{S_B}')
    A(f'v_add_u32 v{V_ADDR2}, s{S_A}, v{V_ADDR2}')
    tile_loads_buf(R0, V_ADDR2, SRD_M2, 1152)
    FLV = V_VEC + 2
    A(f'v_bfe_u32 v{T2}, v{V_LANE}, 1, 3')
    A(f'v_lshlrev_b32 v{V_VEC+14}, 3, v{T2}')
    A(f's_lshl_b32 s{S_M}, s{S_GRP}, 6'); A(f's_add_u32 s{S_M}, s{S_M}, {FLS}')
    A(f'buffer_load_dwordx2 {vr(FLV,2)}, v{V_VEC+14}, {sq(SRD_WS)}, s{S_M} offen sc1')
    A(f'v_lshlrev_b32 v{V_VEC+15}, 7, v{T2}')
    A(f'v_lshlrev_b32 v{T2}, 9, v{T2}')
    A(f'v_lshl_add_u32 v{V_ADDR}, v{V_OPA}, 1, v{T2}')
    slot_addr(V_L4)
    A(f's_lshl_b32 s{S_B}, s{S_WAVE}, 8'); A(f'v_add_u32 v{V_L4}, s{S_B}, v{V_L4}')
    A(f's_and_b32 s{S_G}, s{S_WAVE}, 4'); A(f's_lshl_b32 s{S_D}, s{S_G}, 8'); A(f'v_add_u32 v{V_HB}, s{S_D}, v{V_L16}')
    A(f's_lshl_b32 s{S_G}, s{S_G}, 2'); A(f's_sub_u32 s{S_G}, {CNT+16}, s{S_G}')
    A(f's_lshr_b32 s{S_A}, s{S_F}, 1')
    A(f's_lshl_b32 s{S_B}, s{S_GRP}, 10'); A(f's_and_b32 s{S_D}, s{S_A}, 1'); A(f's_lshl_b32 s{S_D}, s{S_D}, 3'); A(f's_add_u32 s{S_B}, s{S_B}, s{S_D}'); A(f's_add_u32 s{S_M+1}, s{S_B}, {ML}')
    A(f's_lshl_b32 s{S_A}, s{S_A}, 12'); A(f's_and_b32 s{S_D}, s{S_F}, 1'); A(f's_lshl_b32 s{S_D}, s{S_D}, 8'); A(f's_add_u32 s{S_A}, s{S_A}, s{S_D}'); A(f's_add_u32 s{S_M+2}, s{S_A}, {H2O}')
    h3_slot(S_M+3)
    tile_perm(R0, R1, after=lambda tp: A(f's_waitcnt vmcnt({7-2*tp})'))
    g.lab('L_CB_fl')
    A('s_waitcnt vmcnt(0)')
    A(f'v_cmp_ne_u64 vcc, {sp(S_E0)}, {vr(FLV,2)}')
    A('s_cmp_eq_u64 vcc, 0'); A('s_cbranch_scc1 L_CB_flok')
    spin('L_CB_flok')
    A('s_sleep 2')
    A(f'buffer_load_dwordx2 {vr(FLV,2)}, v{V_VEC+14}, {sq(SRD_WS)}, s{S_M} offen sc1')
    A('s_branch L_CB_fl')
    g.lab('L_CB_flok')
    stamp(5)
    g.lab('L_CB_ml')
    OO = R0
    g.lab('L_CB_poll')
    A(f'buffer_load_dwordx2 {vr(OO+8,2)}, v{V_VEC+15}, {sq(SRD_WS)}, s{S_M+1} offen sc1')
    A(f'buffer_load_dwordx4 {vr(OO,4)}, v{V_ADDR}, {sq(SRD_WS)}, s{S_M+2} offen sc1')
    A(f'buffer_load_dwordx4 {vr(OO+4,4)}, v{V_ADDR}, {sq(SRD_WS)}, s{S_M+2} offen offset:16 sc1')
    A('s_waitcnt vmcnt(0)')
    A(f'v_max_f32_dpp v{T4}, v{OO+8}, v{OO+8} row_ror:2 {DPP}')
    A(f'v_max3_u32 v{T2}, v{OO}, v{OO+1}, v{OO+2}'); A(f'v_max3_u32 v{T3}, v{OO+3}, v{OO+4}, v{OO+5}')
    A(f'v_max_f32_dpp v{T4}, v{T4}, v{T4} row_ror:4 {DPP}')
    A(f'v_max3_u32 v{T2}, v{T2}, v{OO+6}, v{OO+7}'); A(f'v_max3_u32 v{T3}, v{T3}, v{OO+8}, v{OO+9}')
    A(f'v_max_f32_dpp v{T4}, v{T4}, v{T4} row_ror:8 {DPP}')
    A(f'v_max_u32 v{T2}, v{T2}, v{T3}'); A(f'v_cmp_eq_u32 vcc, -1, v{T2}')
    A(f'v_sub_f32 v{T4}, v{OO+8}, v{T4}')
    retry('L_CB_poll', 'L_CB_ok', sleep=DSLEEP)
    g.lab('L_CB_ok')
    stamp(6)
    A(f'v_mul_f32 v{T4}, {fx(1.4426950408889634)}, v{T4}')
    A(f'v_exp_f32 v{T4}, v{T4}'); g.nop(1)
    A(f'v_mul_f32 v{OO+8}, v{T4}, v{OO+9}')
    for k in range(0, 8, 2): A(f'v_pk_mul_f32 {vr(OO+k,2)}, {vr(OO+k,2)}, {vr(T4,2)} op_sel_hi:[1,0]')
    for sh in (2, 4, 8):
        A(f'v_add_f32_dpp v{OO+8}, v{OO+8}, v{OO+8} row_ror:{sh} {DPP}')
        if sh == 8: A(f'v_add_f32_dpp v{OO}, v{OO}, v{OO} row_ror:{sh} {DPP}'); A(f'v_rcp_f32 v{T4}, v{OO+8}')
        for k in range(1 if sh == 8 else 0, 8): A(f'v_add_f32_dpp v{OO+k}, v{OO+k}, v{OO+k} row_ror:{sh} {DPP}')
    for k in range(0, 8, 2): A(f'v_pk_mul_f32 {vr(OO+k,2)}, {vr(OO+k,2)}, {vr(T4,2)} op_sel_hi:[1,0]')
    for k in range(4): A(f'v_cvt_pk_bf16_f32 v{V_VEC+k}, v{OO+2*k}, v{OO+2*k+1}')
    g.nop(2)
    tile_mfma(R1, V_VEC, V_ACC)
    hb_combine(V_ACC, V_VEC+4)
    A('s_mov_b64 exec, 0xffff')
    A(f'ds_write_b128 v{V_L4}, {vr(V_VEC+4,4)} offset:{OPART}')
    A('s_mov_b64 exec, -1')
    A(f'v_mov_b32 v{T0}, s{S_G}'); A(f'v_mov_b32 v{T1}, 1')
    A('s_mov_b64 exec, 1')
    A(f'ds_add_rtn_u32 v{T1}, v{T0}, v{T1}')
    A('s_mov_b64 exec, -1')
    A('s_waitcnt lgkmcnt(0)')
    A(f'v_readfirstlane_b32 s{S_T}, v{T1}')
    A(f's_cmp_eq_u32 s{S_T}, 3'); A('s_cbranch_scc0 L_fin')
    for w in range(4): A(f'ds_read_b128 {vr(R0+4*w,4)}, v{V_HB} offset:{OPART+256*w}')
    A('s_waitcnt lgkmcnt(2)')
    for k in (0, 2): A(f'v_pk_add_f32 {vr(R0+k,2)}, {vr(R0+k,2)}, {vr(R0+4+k,2)}')
    A('s_waitcnt lgkmcnt(0)')
    for k in (0, 2): A(f'v_pk_add_f32 {vr(R0+8+k,2)}, {vr(R0+8+k,2)}, {vr(R0+12+k,2)}')
    for k in (0, 2): A(f'v_pk_add_f32 {vr(R0+k,2)}, {vr(R0+k,2)}, {vr(R0+8+k,2)}')
    for k in range(4): san(R0+k)
    store16(R0, V_L16, S_M+3)
    stamp(7)
    A('s_branch L_fin')

    g.lab('L_S')
    KR, VRR, VT = R0, R1, R0
    A(f's_and_b32 s{S_G}, s{S_IDX}, 15'); A(f's_lshr_b32 s{S_KS}, s{S_IDX}, 4')
    A(f's_lshl_b32 s{S_IDX}, s{S_G}, 3'); A(f's_add_u32 s{S_IDX}, s{S_IDX}, s{S_KS}')
    A(f's_lshl_b32 s{S_A}, s{S_G}, 21'); A(f's_lshl_b32 s{S_B}, s{S_KS}, 16'); A(f's_add_u32 s{S_A}, s{S_A}, s{S_B}')
    A(f's_lshl_b32 s{S_B}, s{S_WAVE}, 13'); A(f's_add_u32 s{S_A}, s{S_A}, s{S_B}'); A(f's_add_u32 s{S_A}, s{S_A}, {6144*256}')
    A(f'v_lshrrev_b32 v{T1}, 4, v{V_LANE}'); A(f'v_and_b32 v{T0}, 15, v{V_LANE}')
    A(f'v_xor_b32 v{T4}, v{T0}, v{T1}'); A(f'v_lshlrev_b32 v{T2}, 4, v{T4}'); A(f'v_lshl_add_u32 v{T2}, v{T1}, 8, v{T2}')
    A(f'v_add_u32 v{V_VEC}, s{S_A}, v{T2}')
    A(f'v_xor_b32 v{V_VEC+1}, 64, v{V_VEC}'); A(f'v_xor_b32 v{V_VEC+2}, {128+4096}, v{V_VEC}'); A(f'v_xor_b32 v{V_VEC+3}, {192+4096}, v{V_VEC}')
    A(f'v_lshlrev_b32 v{T2}, 11, v{T1}'); A(f'v_lshl_add_u32 v{T0}, v{T0}, 4, v{T2}')
    A(f'v_add_u32 v{V_ADDR2}, s{S_A}, v{T0}')
    A(f's_add_u32 s{S_B}, s{S_B}, {KLDS}'); A(f's_mov_b32 m0, s{S_B}')
    A(f'v_bfe_u32 v{T2}, v{V_LANE}, 2, 2'); A(f'v_lshlrev_b32 v{T2}, 11, v{T2}')
    A(f'v_and_b32 v{T3}, 3, v{V_LANE}'); A(f'v_lshl_add_u32 v{T2}, v{T3}, 8, v{T2}')
    A(f'v_lshl_add_u32 v{T2}, v{T4}, 4, v{T2}'); A(f'v_add_u32 v{V_KA}, s{S_B}, v{T2}')
    for kk in range(1, 4): A(f'v_xor_b32 v{V_KA+kk}, {kk*64}, v{V_KA}')
    lane_consts(l16=True)
    A(f'v_and_b32 v{T0}, 1, v{V_LANE}'); A(f'v_lshlrev_b32 v{T2}, 8, v{T0}'); A(f'v_lshl_add_u32 v{V_HB}, v{T1}, 4, v{T2}')
    A(f'v_lshlrev_b32 v{V_L4}, 5, v{T0}')
    A(f's_lshl_b32 s{S_C}, s{S_WAVE}, 2'); A(f'v_add_u32 v{V_OPA}, s{S_C}, v{V_L4}')
    A(f'v_lshrrev_b32 v{V_ADDR}, 5, v{V_LANE}'); A(f'v_lshlrev_b32 v{V_ADDR}, 12, v{V_ADDR}'); A(f'v_and_b32 v{T0}, 31, v{V_LANE}'); A(f'v_lshl_add_u32 v{V_ADDR}, v{T0}, 4, v{V_ADDR}')
    A(f's_lshl_b32 s{S_M}, s{S_G}, 4'); A(f's_add_u32 s{S_M}, s{S_M}, s{S_KS}'); A(f's_lshl_b32 s{S_M}, s{S_M}, 9'); A(f's_add_u32 s{S_M}, s{S_M}, {H2O}')
    A(f's_lshl_b32 s{S_M+1}, s{S_IDX}, 7'); A(f's_add_u32 s{S_M+1}, s{S_M+1}, {ML}')
    waitk()
    srd_ws()
    def k_loads():
        for j in range(8):
            if j == 4: A(f's_add_u32 s{S_B}, s{S_B}, 4096'); A(f's_mov_b32 m0, s{S_B}'); g.nop(1)
            A(f'global_load_lds_dwordx4 v{V_VEC+j//2}, {sp(P_K)} offset:{1024*(j%4)} nt')
    if not UNG:
        A(f's_cmp_lt_u32 s{S_WAVE}, {max(PW,1)}'); A('s_cbranch_scc0 L_S_p1')
        if PW: k_loads()
        A(f's_cmp_eq_u32 s{S_WAVE}, 0'); A('s_cbranch_scc0 L_S_w1')
        for k in range(4): A(f'v_mov_b32 v{V_ACC+k}, -1')
        A(f'buffer_store_dwordx4 {vr(V_ACC,4)}, v{V_ADDR}, {sq(SRD_WS)}, s{S_M} offen sc1')
        store16(V_ACC, V_L16, S_M+1, mask='1')
        if PW: A('s_waitcnt vmcnt(6)')
        epoch_load()
        A('s_waitcnt vmcnt(0)')
        epoch_take('S0', sleep=1)
        A(f's_lshl_b32 s{S_E}, s{S_IDX}, 3'); A(f's_add_u32 s{S_E}, s{S_E}, {FLS}')
        A('s_mov_b64 exec, 1')
        A(f'buffer_store_dwordx2 {vr(V_EP,2)}, v{V_L16}, {sq(SRD_WS)}, s{S_E} offen sc1')
        A('s_mov_b64 exec, -1')
        if PW == 0: A('s_branch L_S_p1')
        A('s_barrier')
        if PW2 > PW: A('s_barrier')
        A('s_branch L_S_b0')
        g.lab('L_S_w1')
        A('s_waitcnt vmcnt(0)')
        A('s_barrier')
        if PW2 > PW: A('s_barrier')
        A('s_branch L_S_b0')
        g.lab('L_S_p1')
        A('s_barrier')
        if PW2 > PW:
            A(f's_cmp_lt_u32 s{S_WAVE}, {PW2}'); A('s_cbranch_scc0 L_S_p2')
            k_loads()
            A('s_waitcnt vmcnt(0)')
            A('s_barrier')
            A('s_branch L_S_b0')
            g.lab('L_S_p2')
            A('s_barrier')
        stamp(7)
        k_loads()
    else:
        A(f's_cmp_eq_u32 s{S_WAVE}, 0'); A('s_cbranch_scc0 L_S_p1')
        for k in range(4): A(f'v_mov_b32 v{V_ACC+k}, -1')
        A(f'buffer_store_dwordx4 {vr(V_ACC,4)}, v{V_ADDR}, {sq(SRD_WS)}, s{S_M} offen sc1')
        store16(V_ACC, V_L16, S_M+1, mask='1')
        g.lab('L_S_p1')
        k_loads()
    g.lab('L_S_b0')
    if not NOB0: A('s_barrier')
    def v_loads():
        for t in range(8):
            A(f'global_load_dwordx4 {vr(VRR+4*t,4)}, v{V_ADDR2}, {sp(P_V)} offset:{256*t} nt')
    if VH < 8:
        A(f's_cmp_ge_u32 s{S_WAVE}, {VH}'); A('s_cbranch_scc0 L_S_v')
        A('s_waitcnt vmcnt(0)')
        for T in range(2):
            for kk in range(4):
                A(f'ds_read_b128 {vr(KR+16*T+4*kk,4)}, v{V_KA+kk} offset:{1024*T}')
        A('s_waitcnt lgkmcnt(0)')
        A('s_barrier')
        v_loads()
        stamp(2)
        A('s_branch L_S_qk')
        g.lab('L_S_v')
    v_loads()
    stamp(2)
    A(f's_cmp_eq_u32 s{S_WAVE}, 0'); A('s_cbranch_scc0 L_S_b1')
    if UNG:
        epoch_load()
        A('s_waitcnt vmcnt(0)')
        epoch_take('S0', sleep=1)
        A(f's_lshl_b32 s{S_E}, s{S_IDX}, 3'); A(f's_add_u32 s{S_E}, s{S_E}, {FLS}')
        A('s_mov_b64 exec, 1')
        A(f'buffer_store_dwordx2 {vr(V_EP,2)}, v{V_L16}, {sq(SRD_WS)}, s{S_E} offen sc1')
        A('s_mov_b64 exec, -1')
    A(f's_lshl_b32 s{S_A}, s{S_G}, 12'); A(f's_add_u32 s{S_A}, s{S_A}, {H1}')
    Q0 = 32
    A(f'v_lshlrev_b32 v{T4}, 2, v{V_LANE}')
    g.lab('L_S_poll')
    for j in range(4): A(f'buffer_load_dwordx4 {vr(Q0+4*j,4)}, v{V_L16}, {sq(SRD_WS)}, s{S_A} offen offset:{1024*j} sc1')
    A('s_waitcnt vmcnt(0)')
    tag_check(Q0, 4, T2, T3)
    retry('L_S_poll', 'L_S_ok', sleep=QSL)
    g.lab('L_S_ok')
    stamp(3)
    A(f'v_pk_add_f32 {vr(Q0,2)}, {vr(Q0,2)}, {vr(Q0+8,2)}'); A(f'v_pk_add_f32 {vr(Q0+4,2)}, {vr(Q0+4,2)}, {vr(Q0+12,2)}')
    A(f'v_cvt_pk_bf16_f32 v{T2}, v{Q0}, v{Q0+1}'); A(f'v_cvt_pk_bf16_f32 v{T3}, v{Q0+4}, v{Q0+5}')
    A(f'ds_write2_b32 v{T4}, v{T2}, v{T3} offset0:{VEC//4} offset1:{VEC//4+64}')
    g.lab('L_S_b1')
    A('s_waitcnt vmcnt(8)')
    for T in range(2):
        for kk in range(4):
            A(f'ds_read_b128 {vr(KR+16*T+4*kk,4)}, v{V_KA+kk} offset:{1024*T}')
    A('s_waitcnt lgkmcnt(0)')
    A('s_barrier')
    g.lab('L_S_qk')
    stamp(4)
    for kk in range(4): A(f'ds_read_b128 {vr(V_VEC+4*kk,4)}, v{V_HB} offset:{VEC+64*kk}')
    SC = V_ACC
    for kk in range(4):
        A(f's_waitcnt lgkmcnt({3-kk})')
        for T in range(2):
            c = '0' if kk == 0 else vr(SC+4*T, 4)
            A(f'v_mfma_f32_16x16x32_bf16 {vr(SC+4*T,4)}, {vr(KR+16*T+4*kk,4)}, {vr(V_VEC+4*kk,4)}, {c}')
    A(f's_mov_b32 s{S_C}, {fx(1.4426950408889634)}')
    A(f's_mov_b32 s{S_SC}, {fx(128**-0.5)}')
    A(f's_lshl_b32 s{S_B}, s{S_WAVE}, 10'); A(f's_add_u32 s{S_B}, s{S_B}, {OPART}')
    A(f'v_lshl_add_u32 v{V_ADDR2}, v{V_LANE}, 5, s{S_B}')
    g.nop(3)
    for k in range(8): rnd(SC+k, SC+k)
    for k in range(0, 8, 2): A(f'v_pk_mul_f32 {vr(SC+k,2)}, {vr(SC+k,2)}, {sp(S_SC)} op_sel_hi:[1,0]')
    for k in range(8): rnd(SC+k, SC+k)
    A(f'v_max3_f32 v{T2}, v{SC}, v{SC+1}, v{SC+2}'); A(f'v_max3_f32 v{T3}, v{SC+3}, v{SC+4}, v{SC+5}'); A(f'v_max3_f32 v{T2}, v{T2}, v{SC+6}, v{SC+7}'); A(f'v_max_f32 v{T2}, v{T2}, v{T3}')
    for sw in ('v_permlane16_swap_b32', 'v_permlane32_swap_b32'):
        A(f'v_mov_b32 v{T3}, v{T2}'); g.nop(2); A(f'{sw} v{T2}, v{T3}'); g.nop(1); A(f'v_max_f32 v{T2}, v{T2}, v{T3}')
    A(f'ds_write_b32 v{V_OPA}, v{T2} offset:{WMAX}')
    A('s_waitcnt lgkmcnt(0)')
    A('s_barrier')
    MX = V_VEC
    A(f'ds_read_b128 {vr(MX,4)}, v{V_L4} offset:{WMAX}'); A(f'ds_read_b128 {vr(MX+4,4)}, v{V_L4} offset:{WMAX+16}')
    tile_perm(VRR, VT, after=lambda tp: A(f's_waitcnt vmcnt({6-2*tp})')) if PERMFIRST else None
    A('s_waitcnt lgkmcnt(0)')
    A(f'v_max3_f32 v{T4}, v{MX}, v{MX+1}, v{MX+2}'); A(f'v_max3_f32 v{T3}, v{MX+3}, v{MX+4}, v{MX+5}'); A(f'v_max3_f32 v{T4}, v{T4}, v{MX+6}, v{MX+7}'); A(f'v_max_f32 v{T4}, v{T4}, v{T3}')
    A(f'v_mul_f32 v{T3}, s{S_C}, v{T4}')
    for k in range(8): A(f'v_fma_f32 v{SC+k}, v{SC+k}, s{S_C}, -v{T3}')
    for k in range(8): A(f'v_exp_f32 v{SC+k}, v{SC+k}')
    PP = V_VEC + 8
    ES = V_VEC
    A(f'v_add_f32 v{ES}, v{SC}, v{SC+1}')
    for k in range(4): A(f'v_cvt_pk_bf16_f32 v{PP+k}, v{SC+2*k}, v{SC+2*k+1}')
    A(f'v_add_f32 v{ES+1}, v{SC+2}, v{SC+3}'); A(f'v_add_f32 v{ES+2}, v{SC+4}, v{SC+5}'); A(f'v_add_f32 v{ES+3}, v{SC+6}, v{SC+7}')
    if not PERMFIRST: tile_perm(VRR, VT, after=lambda tp: A(f's_waitcnt vmcnt({6-2*tp})'))
    stamp(5)
    g.nop(1)
    for j in range(8):
        A(f'v_mfma_f32_16x16x32_bf16 {vr(V_ACC+4*j,4)}, {vr(PP,4)}, {vr(VT+4*j,4)}, 0')
        if j == 0: A(f'v_add_f32 v{ES}, v{ES}, v{ES+1}'); A(f'v_add_f32 v{ES+2}, v{ES+2}, v{ES+3}')
        if j == 1: A(f'v_add_f32 v{T2}, v{ES}, v{ES+2}')
        if j == 2: A(f'v_mov_b32 v{T3}, v{T2}')
        if j == 4: A(f'v_permlane16_swap_b32 v{T2}, v{T3}')
        if j == 5: A(f'v_add_f32 v{T2}, v{T2}, v{T3}')
        if j == 6: A(f'v_mov_b32 v{T3}, v{T2}')
    A('s_mov_b64 exec, 0xffff')
    for j in range(8):
        A(f'ds_write2_b32 v{V_ADDR2}, v{V_ACC+4*j}, v{V_ACC+4*j+1} offset0:{j} offset1:{128+j}')
        if j == 0: g.nop(1)
    A('s_mov_b64 exec, -1')
    A(f'v_permlane32_swap_b32 v{T2}, v{T3}')
    g.nop(1)
    A(f'v_add_f32 v{T2}, v{T2}, v{T3}')
    A(f'ds_write_b32 v{V_OPA}, v{T2} offset:{WSUM}')
    A('s_waitcnt lgkmcnt(0)')
    A('s_barrier')
    A(f's_cmp_eq_u32 s{S_WAVE}, 0'); A('s_cbranch_scc0 L_S_ml')
    PB = R1
    for w in range(8): A(f'ds_read_b128 {vr(PB+4*w,4)}, v{V_L16} offset:{OPART+1024*w}')
    A('s_waitcnt lgkmcnt(4)')
    for a, b in ((0, 1), (2, 3), (0, 2)):
        for k in (0, 2): A(f'v_pk_add_f32 {vr(PB+4*a+k,2)}, {vr(PB+4*a+k,2)}, {vr(PB+4*b+k,2)}')
    A('s_waitcnt lgkmcnt(0)')
    for a, b in ((4, 5), (6, 7), (4, 6), (0, 4)):
        for k in (0, 2): A(f'v_pk_add_f32 {vr(PB+4*a+k,2)}, {vr(PB+4*a+k,2)}, {vr(PB+4*b+k,2)}')
    for k in range(4): san(PB+k)
    A(f'buffer_store_dwordx4 {vr(PB,4)}, v{V_ADDR}, {sq(SRD_WS)}, s{S_M} offen sc1')
    stamp(6)
    A('s_branch L_fin')
    g.lab('L_S_ml')
    A(f's_cmp_eq_u32 s{S_WAVE}, 1'); A('s_cbranch_scc0 L_fin')
    A(f'ds_read_b128 {vr(V_VEC,4)}, v{V_L4} offset:{WSUM}'); A(f'ds_read_b128 {vr(V_VEC+4,4)}, v{V_L4} offset:{WSUM+16}')
    A(f'v_lshlrev_b32 v{T0}, 3, v{V_LANE}')
    san(T4)
    A('s_waitcnt lgkmcnt(0)')
    for k in (0, 2): A(f'v_pk_add_f32 {vr(V_VEC+k,2)}, {vr(V_VEC+k,2)}, {vr(V_VEC+4+k,2)}')
    A(f'v_pk_add_f32 {vr(V_VEC,2)}, {vr(V_VEC,2)}, {vr(V_VEC+2,2)}')
    A(f'v_add_f32 v{T5}, v{V_VEC}, v{V_VEC+1}')
    san(T5)
    A('s_mov_b64 exec, 3')
    A(f'buffer_store_dwordx2 {vr(T4,2)}, v{T0}, {sq(SRD_WS)}, s{S_M+1} offen sc1')
    A('s_mov_b64 exec, -1')
    stamp(8)
    A('s_branch L_fin')

    g.lab('L_T')
    if TPRIO: A('s_setprio 3')
    A(f's_sub_u32 s{S_IDX}, s2, 256')
    A(f's_mov_b32 s{S_ST0}, 0')
    W1F = 16; B1F = 26; W2P = 36; TT0 = 42; U = 52; Z = 62; G_ = 72; ACC = 80; RAW = 96; CV1 = 124; CV0 = 126
    RC = 2*NB - RS
    assert NB <= RS <= 16 and RC >= 1
    A(f's_lshr_b32 s{S_G}, s{S_IDX}, 4'); A(f's_lshl_b32 s{S_G}, s{S_G}, 3'); A(f's_and_b32 s{S_A}, s{S_IDX}, 7'); A(f's_or_b32 s{S_G}, s{S_G}, s{S_A}')
    A(f'v_lshlrev_b32 v{T1}, 4, v0'); A(f'v_lshlrev_b32 v{T2}, 1, v0'); A(f'v_add_u32 v{T2}, 8192, v{T2}')
    waitk()
    if TGATE == 2:
        A(f's_cmp_eq_u32 s{S_WAVE}, 0'); A('s_cbranch_scc0 L_TG_b')
        epoch_load(RAW); A('s_waitcnt vmcnt(0)'); epoch_take('TG', RAW, sleep=1)
        g.lab('L_TG_b')
        A('s_barrier')
    if TGATE == 1:
        A(f's_bitcmp1_b32 s{S_IDX}, 3'); A('s_cbranch_scc1 L_T_go')
        A(f'v_mov_b32 v{T0}, 0')
        g.lab('L_T_gate')
        A(f'global_load_dwordx2 {vr(RAW,2)}, v{T0}, {sp(P_DBG)} sc1')
        A(f'global_load_dwordx2 {vr(RAW+2,2)}, v{T0}, {sp(P_WS)} offset:{H0T+8} sc1')
        A('s_waitcnt vmcnt(0)')
        A(f'v_cmp_ne_u64 vcc, {vr(RAW,2)}, {vr(RAW+2,2)}')
        A(f'v_cmp_eq_u32 {sp(S_M)}, 0, v{RAW+1}')
        A(f's_or_b64 vcc, vcc, {sp(S_M)}')
        retry('L_T_gate', 'L_T_go', sleep=4)
        g.lab('L_T_go')
    A(f'global_load_dwordx4 {vr(RAW,4)}, v{T1}, {sp(P_W1)}')
    A(f'global_load_dwordx4 {vr(RAW+4,4)}, v{T1}, {sp(P_B1)}')
    A(f'global_load_dwordx4 {vr(W2P,4)}, v{T1}, {sp(P_W2)}')
    A(f'global_load_ushort v{RAW+8}, v{T2}, {sp(P_W1)}')
    A(f'global_load_ushort v{RAW+9}, v{T2}, {sp(P_B1)}')
    A(f'global_load_ushort v{W2P+4}, v{T2}, {sp(P_W2)}')
    if TPRIO: A('s_setprio 0')
    srd_ws()
    C1 = fx(-2.0*0.7978845608028654*0.044715*1.4426950408889634)
    C0 = fx(-2.0*0.7978845608028654*1.4426950408889634)
    for k in range(2): A(f'v_mov_b32 v{CV1+k}, {C1}'); A(f'v_mov_b32 v{CV0+k}, {C0}')
    A(f's_lshl_b32 s{S_A}, s{S_G}, 16'); A(f's_or_b32 s{S_A}, s{S_A}, 0x3f800000')
    A(f's_mov_b32 s{S_SC}, {hex(0x80000000 | ((127+EMIN+RS-NB) << 23))}')
    A(f's_bitcmp1_b32 s{S_IDX}, 3'); A(f's_cselect_b32 s{S_SC}, {hex((127+EMIN) << 23)}, s{S_SC}')
    for k in range(16): A(f'v_mov_b32 v{ACC+k}, 0')
    A('s_waitcnt vmcnt(0)')
    stamp(2)
    if stamps: A(f's_memtime s[{S_ST+16}:{S_ST+17}]')
    for k in range(4):
        A(f'v_lshlrev_b32 v{W1F+2*k}, 16, v{RAW+k}'); A(f'v_and_b32 v{W1F+2*k+1}, 0xffff0000, v{RAW+k}')
        A(f'v_lshlrev_b32 v{B1F+2*k}, 16, v{RAW+4+k}'); A(f'v_and_b32 v{B1F+2*k+1}, 0xffff0000, v{RAW+4+k}')
    A(f'v_lshlrev_b32 v{W1F+8}, 16, v{RAW+8}'); A(f'v_lshlrev_b32 v{B1F+8}, 16, v{RAW+9}')
    def t0_from(sreg):
        for k in range(9): A(f'v_mul_f32 v{TT0+k}, s{sreg}, v{W1F+k}')
        for k in range(9): rnd(TT0+k, TT0+k)
    def gelu_row(acc, first=False):
        n = 9
        P = range(0, 8, 2)
        if PK:
            for k in P: A(f'v_pk_fma_f32 {vr(U+k,2)}, {vr(TT0+k,2)}, {sp(S_SC)}, {vr(B1F+k,2)} op_sel_hi:[1,0,1]')
            A(f'v_fma_f32 v{U+8}, v{TT0+8}, s{S_SC}, v{B1F+8}')
        else:
            for k in range(n): A(f'v_fma_f32 v{U+k}, v{TT0+k}, s{S_SC}, v{B1F+k}')
        for k in range(n): rnd(U+k, U+k)
        if PK:
            for k in P: A(f'v_pk_mul_f32 {vr(Z+k,2)}, {vr(U+k,2)}, {vr(U+k,2)}')
            A(f'v_mul_f32 v{Z+8}, v{U+8}, v{U+8}')
            for k in P: A(f'v_pk_fma_f32 {vr(Z+k,2)}, {vr(Z+k,2)}, {vr(CV1,2)}, {vr(CV0,2)}')
            A(f'v_fma_f32 v{Z+8}, v{Z+8}, v{CV1}, v{CV0}')
            for k in P: A(f'v_pk_mul_f32 {vr(Z+k,2)}, {vr(Z+k,2)}, {vr(U+k,2)}')
            A(f'v_mul_f32 v{Z+8}, v{Z+8}, v{U+8}')
        else:
            for k in range(n): A(f'v_mul_f32 v{Z+k}, v{U+k}, v{U+k}')
            for k in range(n): A(f'v_fmaak_f32 v{Z+k}, v{Z+k}, v{CV1}, {C0}')
            for k in range(n): A(f'v_mul_f32 v{Z+k}, v{Z+k}, v{U+k}')
        for k in range(n): A(f'v_exp_f32 v{Z+k}, v{Z+k}')
        if PK:
            for k in P: A(f'v_pk_add_f32 {vr(Z+k,2)}, {vr(Z+k,2)}, 1.0 op_sel_hi:[1,0]')
            A(f'v_add_f32 v{Z+8}, 1.0, v{Z+8}')
        else:
            for k in range(n): A(f'v_add_f32 v{Z+k}, 1.0, v{Z+k}')
        for k in range(n): A(f'v_rcp_f32 v{Z+k}, v{Z+k}')
        if PK:
            for k in P: A(f'v_pk_mul_f32 {vr(Z+k,2)}, {vr(Z+k,2)}, {vr(U+k,2)}')
            A(f'v_mul_f32 v{Z+8}, v{Z+8}, v{U+8}')
        else:
            for k in range(n): A(f'v_mul_f32 v{Z+k}, v{Z+k}, v{U+k}')
        for k in range(4): A(f'v_cvt_pk_bf16_f32 v{G_+k}, v{Z+2*k}, v{Z+2*k+1}')
        A(f'v_cvt_pk_bf16_f32 v{G_+4}, v{Z+8}, 0')
        for k in range(5):
            if k == 0 and first: A(f'v_dot2_f32_bf16 v{acc}, v{G_+k}, v{W2P+k}, 0'); g.nop(3)
            else: A(f'v_dot2c_f32_bf16 v{acc}, v{G_+k}, v{W2P+k}')
    t0_from(S_A)
    if TLOOP:
        epoch_load(RAW)
        A(f's_bitcmp1_b32 s{S_IDX}, 3'); A(f's_cselect_b32 s{S_NT}, {RS}, {RC}')
        A(f's_mov_b32 s{S_I}, 0')
        A('.p2align 3')
        g.lab('L_T_loop')
        gelu_row(T4, first=True)
        A(f's_add_u32 s{S_SC}, s{S_SC}, {1<<23}')
        A(f's_cmp_eq_u32 s{S_I}, {NB-1}'); A(f's_cselect_b32 s{S_SC}, {hex(0x80000000 | ((127+EMIN) << 23))}, s{S_SC}')
        A(f's_set_gpr_idx_on s{S_I}, gpr_idx(DST)')
        g.nop(1)
        A(f'v_mov_b32 v{ACC}, v{T4}')
        A('s_set_gpr_idx_off')
        A(f's_add_u32 s{S_I}, s{S_I}, 1'); A(f's_cmp_lt_u32 s{S_I}, s{S_NT}'); A('s_cbranch_scc1 L_T_loop')
    else:
        for r in range(RS):
            if r == max(RC - 2, 0): epoch_load(RAW)
            gelu_row(ACC + r)
            if r == RC - 1 and RC < RS:
                A(f's_bitcmp1_b32 s{S_IDX}, 3'); A('s_cbranch_scc0 L_T_rows')
            if r == NB - 1: A(f's_mov_b32 s{S_SC}, {hex(0x80000000 | ((127+EMIN) << 23))}')
            elif r < RS - 1: A(f's_add_u32 s{S_SC}, s{S_SC}, {1<<23}')
    g.lab('L_T_rows')
    stamp(3)
    if stamps: A(f's_memtime s[{S_ST+18}:{S_ST+19}]')
    g.nop(3)
    for i in range(8):
        A(f'v_add_f32_dpp v{U+i}, v{ACC+2*i}, v{ACC+2*i} row_ror:8 row_mask:0xf bank_mask:0x3')
        A(f'v_add_f32_dpp v{U+i}, v{ACC+2*i+1}, v{ACC+2*i+1} row_ror:8 row_mask:0xf bank_mask:0xc')
    for i in range(4):
        A(f'v_add_f32_dpp v{Z+i}, v{U+2*i}, v{U+2*i} row_half_mirror row_mask:0xf bank_mask:0x5')
        A(f'v_add_f32_dpp v{Z+i}, v{U+2*i+1}, v{U+2*i+1} row_half_mirror row_mask:0xf bank_mask:0xa')
    for qp in ('[1,0,3,2]', '[2,3,0,1]'):
        for i in range(4): A(f'v_add_f32_dpp v{Z+i}, v{Z+i}, v{Z+i} quad_perm:{qp} {DPP}')
    g.nop(1)
    A(f'v_permlane16_swap_b32 v{Z}, v{Z+1}'); A(f'v_permlane16_swap_b32 v{Z+2}, v{Z+3}')
    g.nop(1)
    A(f'v_add_f32 v{Z}, v{Z}, v{Z+1}'); A(f'v_add_f32 v{Z+2}, v{Z+2}, v{Z+3}')
    g.nop(2)
    A(f'v_permlane32_swap_b32 v{Z}, v{Z+2}')
    A(f'v_bfe_u32 v{T0}, v{V_LANE}, 3, 1'); A(f'v_bfe_u32 v{T1}, v{V_LANE}, 2, 1'); A(f'v_lshl_add_u32 v{T0}, v{T1}, 1, v{T0}')
    A(f'v_lshrrev_b32 v{T1}, 4, v{V_LANE}'); A(f'v_lshl_add_u32 v{T0}, v{T1}, 2, v{T0}')
    A(f's_lshl_b32 s{S_B}, s{S_WAVE}, 6'); A(f'v_lshl_add_u32 v{T0}, v{T0}, 2, s{S_B}')
    A(f'v_add_f32 v{Z}, v{Z}, v{Z+2}')
    A(f'ds_write_b32 v{T0}, v{Z} offset:{TRED}')
    A('s_waitcnt vmcnt(0) lgkmcnt(0)')
    epoch_take('T', RAW)
    A('s_barrier')
    A(f's_cmp_eq_u32 s{S_WAVE}, 7'); A('s_cbranch_scc0 L_T_pubdone')
    A(f'v_and_b32 v{T0}, 7, v{V_LANE}'); A(f'v_lshlrev_b32 v{T1}, 3, v{T0}'); A(f'v_lshlrev_b32 v{T0}, 4, v{T0}')
    for w in range(8): A(f'ds_read_b64 {vr(RAW+2*w,2)}, v{T1} offset:{TRED+64*w}')
    A(f's_lshl_b32 s{S_A}, s{S_G}, 8'); A(f's_bitcmp1_b32 s{S_IDX}, 3'); A(f's_cselect_b32 s{S_B}, 0, 128'); A(f's_add_u32 s{S_A}, s{S_A}, s{S_B}'); A(f's_add_u32 s{S_A}, s{S_A}, {TB}')
    A('s_waitcnt lgkmcnt(0)')
    for a, b in ((0, 1), (2, 3), (4, 5), (6, 7), (0, 2), (4, 6), (0, 4)):
        A(f'v_pk_add_f32 {vr(RAW+2*a,2)}, {vr(RAW+2*a,2)}, {vr(RAW+2*b,2)}')
    A(f'v_mov_b32 v{RAW+2}, s{S_E0}'); A(f'v_mov_b32 v{RAW+3}, s{S_E1}')
    store16(RAW, T0, S_A, mask='0xff')
    stamp(4)
    g.lab('L_T_pubdone')
    A(f's_cmp_lt_u32 s{S_IDX}, 18'); A('s_cbranch_scc0 L_fin')
    A('s_setprio 3')
    A(f's_cmp_ge_u32 s{S_WAVE}, 5'); A('s_cbranch_scc1 L_E_b12')
    A('s_branch L_E')
    g.lab('L_E0')
    epoch_load()
    A('s_waitcnt vmcnt(0)')
    epoch_take('E0', sleep=2)
    g.lab('L_E0b')
    A(f's_mov_b32 s{S_ST0}, 1')
    A(f's_cmp_ge_u32 s{S_WAVE}, 5'); A('s_cbranch_scc1 L_E_tb')
    g.lab('L_E')
    TID8 = V_ADDR; XP = V_ADDR2; MM = U
    PA = ACC
    A(f'v_min_u32 v{T5}, 287, v0')
    A(f'v_lshlrev_b32 v{TID8}, 3, v{T5}'); A(f'v_lshlrev_b32 v{T0}, 2, v{T5}')
    A(f'global_load_dword v{XP}, v{T0}, {sp(P_X)}')
    A(f'v_mov_b32 v{T0}, 0'); A(f'global_load_ushort v{V_HB}, v{T0}, {sp(P_B2)}')
    A(f'global_load_ushort v{V_L4}, v{T0}, {sp(P_X)}')
    lane_consts(l16=True)
    A(f's_mov_b32 s{S_D}, {FLC}')
    g.lab('L_E_fl')
    A(f'buffer_load_dwordx4 {vr(PA,4)}, v{V_L16}, {sq(SRD_WS)}, s{S_D} offen sc1')
    A('s_waitcnt vmcnt(0)')
    A(f'v_cmp_ne_u64 vcc, {sp(S_E0)}, {vr(PA,2)}'); A(f'v_cmp_ne_u64 {sp(S_M+2)}, {sp(S_E0)}, {vr(PA+2,2)}')
    A(f's_bitset0_b32 s{S_M+3}, 31')
    A(f's_or_b64 vcc, vcc, {sp(S_M+2)}')
    retry('L_E_fl', 'L_E_pollM', sleep=8)
    g.lab('L_E_pollM')
    for rho in range(3):
        for q in range(4):
            A(f's_mov_b32 s{S_T}, {HM + rho*9216 + q*2304}')
            A(f'buffer_load_dwordx2 {vr(MM+2*(rho*4+q),2)}, v{TID8}, {sq(SRD_WS)}, s{S_T} offen sc1')
    A(f'v_mov_b32 v{T0}, 0')
    SB3 = RAW + 20
    for rho in range(3):
        A(f's_mov_b32 s{S_T}, {HM + rho*9216 + 2304}')
        A(f'buffer_load_dword v{SB3+rho}, v{T0}, {sq(SRD_WS)}, s{S_T} offen sc1')
    A('s_waitcnt vmcnt(0)')
    sent_check(list(range(MM, MM+24)) + [SB3, SB3+1, SB3+2], T2, T3)
    retry('L_E_pollM', 'L_E_okM', sleep=6)
    g.lab('L_E_okM')
    stamp(5)
    A(f'v_add_f32 v{T2}, v{SB3}, v{SB3+1}'); A(f'v_add_f32 v{T2}, v{T2}, v{SB3+2}'); A(f'v_lshlrev_b32 v{V_L4}, 16, v{V_L4}')
    A(f'v_readfirstlane_b32 s{S_K2}, v{T2}'); A(f'v_readfirstlane_b32 s{S_K1}, v{V_L4}')
    for q in range(4): A(f'v_pk_add_f32 {vr(MM+2*q,2)}, {vr(MM+2*q,2)}, {vr(MM+8+2*q,2)}')
    for q in range(4): A(f'v_pk_add_f32 {vr(MM+2*q,2)}, {vr(MM+2*q,2)}, {vr(MM+16+2*q,2)}')
    for q in range(8): rnd(MM+q, MM+q)
    GA, SB, CB, GB = MM, MM+2, MM+4, MM+6
    X0 = MM + 8
    for k in range(2): A(f'v_add_f32 v{CB+k}, 1.0, v{CB+k}')
    for k in range(2): rnd(CB+k, CB+k)
    A(f'v_lshlrev_b32 v{X0}, 16, v{XP}'); A(f'v_and_b32 v{X0+1}, 0xffff0000, v{XP}')
    A(f'v_lshlrev_b32 v{V_HB}, 16, v{V_HB}')
    A(f'ds_write_b64 v{TID8}, {vr(GB,2)} offset:{GBV}')
    A(f's_movk_i32 s{S_T}, 288'); A(f'v_cmp_gt_u32 {sp(S_SAVE)}, s{S_T}, v0')
    RW = MM + 10; RR = MM + 11; LV = MM + 12
    A(f's_lshl_b32 s{S_B}, s{S_WAVE}, 5'); A(f'v_lshrrev_b32 v{T0}, 4, v{V_LANE}'); A(f'v_lshl_add_u32 v{RW}, v{T0}, 3, s{S_B}')
    A(f'v_and_b32 v{T0}, 15, v{V_LANE}'); A(f'v_lshlrev_b32 v{RR}, 4, v{T0}')
    A(f'v_cmp_gt_u32 vcc, 10, v{T0}'); A(f'v_mov_b32 v{T1}, 1.0'); g.nop(1); A(f'v_cndmask_b32 v{LV}, 0, v{T1}, vcc')
    A(f'v_min_u32 v{RR}, 144, v{RR}')
    A(f'v_cndmask_b32 v{LV+1}, 0, v{T1}, {sp(S_SAVE)}')
    MK0 = 16
    A(f's_mov_b64 {sp(S_M)}, {sp(P_OUT)}')
    for p in range(16): A(f's_mov_b64 {sp(MK0+2*p)}, -1')
    g.lab('L_E_poll3')
    for p in range(16):
        A(f's_mov_b64 exec, {sp(MK0+2*p)}'); A(f's_cbranch_execz L_E_s{p}')
        A(f's_mov_b32 s{S_T}, {H3 + p*2304}')
        A(f'buffer_load_dwordx2 {vr(PA+2*p,2)}, v{TID8}, {sq(SRD_WS)}, s{S_T} offen sc1')
        g.lab(f'L_E_s{p}')
    A('s_mov_b64 exec, -1')
    SM = [MM+14, MM+16, MM+18, MM+20, MM+22, RAW+16, RAW+18, RAW+20]
    A('s_waitcnt vmcnt(0)')
    for k in range(8): A(f'v_pk_add_f32 {vr(SM[k],2)}, {vr(PA+2*k,2)}, {vr(PA+2*k+16,2)}')
    for a, b in [(k, k+4) for k in range(4)] + [(0, 2), (1, 3), (0, 1)]:
        A(f'v_pk_add_f32 {vr(SM[a],2)}, {vr(SM[a],2)}, {vr(SM[b],2)}')
    A(f'v_cmp_u_f32 vcc, v{SM[0]}, v{SM[0]+1}')
    A('s_cmp_eq_u64 vcc, 0'); A('s_cbranch_scc1 L_E_ok3')
    spin('L_E_ok3')
    for p in range(16):
        A(f'v_max_u32 v{T2+(p&1)}, v{PA+2*p}, v{PA+2*p+1}'); A(f'v_cmp_eq_u32 {sp(MK0+2*p)}, -1, v{T2+(p&1)}')
    A(f's_mov_b64 vcc, {sp(MK0)}')
    for p in range(1, 16): A(f's_or_b64 vcc, vcc, {sp(MK0+2*p)}')
    A('s_cmp_eq_u64 vcc, 0'); A('s_cbranch_scc0 L_E_poll3')
    g.lab('L_E_ok3')
    A(f's_mov_b64 {sp(P_OUT)}, {sp(S_M)}')
    stamp(6)
    X1 = PA + 2; HH = PA + 4; Q4 = PA + 12
    for k in range(2): rnd(PA+k, SM[0]+k)
    for k in range(2): A(f'v_mul_f32 v{PA+k}, v{PA+k}, v{GA+k}')
    for k in range(2): rnd(PA+k, PA+k)
    for k in range(2): A(f'v_add_f32 v{X1+k}, v{PA+k}, v{X0+k}')
    for k in range(2): rnd(X1+k, X1+k)
    def block_stats(val, red, sk, mean_out, rstd_out):
        A(f'v_subrev_f32 v{T2}, s{sk}, v{val}'); A(f'v_subrev_f32 v{T0}, s{sk}, v{val+1}')
        A(f'v_mul_f32 v{T3}, v{T2}, v{T2}'); A(f'v_add_f32 v{T2}, v{T2}, v{T0}'); A(f'v_fmac_f32 v{T3}, v{T0}, v{T0}')
        A(f'v_mul_f32 v{T2}, v{T2}, v{LV+1}'); A(f'v_mul_f32 v{T3}, v{T3}, v{LV+1}')
        dpp_sum16([T2, T3])
        A(f'ds_write_b64 v{RW}, {vr(T2,2)} offset:{red}')
        A('s_waitcnt lgkmcnt(0)')
        A('s_barrier')
        A(f'ds_read_b128 {vr(Q4,4)}, v{RR} offset:{red}')
        A('s_waitcnt lgkmcnt(0)')
        A(f'v_pk_add_f32 {vr(T2,2)}, {vr(Q4,2)}, {vr(Q4+2,2)}')
        A(f'v_pk_mul_f32 {vr(T2,2)}, {vr(T2,2)}, {vr(LV,2)} op_sel_hi:[1,0]')
        g.nop(1)
        dpp_sum16([T2, T3])
        ln_stats(T2, T3, f's{sk}', mean_out, rstd_out)
    A(f'ds_write_b64 v{TID8}, {vr(X1,2)} offset:{X1V}')
    block_stats(X1, RED1, S_K1, T4, T5)
    for k in range(2): A(f'v_sub_f32 v{HH+k}, v{X1+k}, v{T4}')
    for k in range(2): rnd(HH+k, HH+k)
    for k in range(2): A(f'v_mul_f32 v{HH+k}, v{HH+k}, v{T5}')
    for k in range(2): rnd(HH+k, HH+k)
    for k in range(2): A(f'v_mul_f32 v{HH+k}, v{HH+k}, v{CB+k}')
    for k in range(2): rnd(HH+k, HH+k)
    for k in range(2): A(f'v_add_f32 v{HH+k}, v{HH+k}, v{SB+k}')
    for k in range(2): rnd(HH+k, HH+k)
    block_stats(HH, RED2, S_K2, T4, T5)
    stamp(7)
    for k in range(2): A(f'v_sub_f32 v{HH+k}, v{HH+k}, v{T4}')
    for k in range(2): rnd(HH+k, HH+k)
    for k in range(2): A(f'v_mul_f32 v{HH+k}, v{HH+k}, v{T5}')
    for k in range(2): rnd(HH+k, HH+k)
    KK = PA + 6; AD = PA + 8; YY = PA + 10
    for k in range(2): A(f'v_bfe_u32 v{KK+k}, v{HH+k}, 23, 8')
    for k in range(2): A(f'v_bfe_u32 v{AD+k}, v{HH+k}, 16, 7')
    for k in range(2): A(f'v_subrev_u32 v{KK+k}, {127+EMIN}, v{KK+k}')
    for k in range(2): A(f'v_lshrrev_b32 v{YY+k}, 31, v{HH+k}')
    A(f'v_cmp_le_u32 {sp(S_M)}, {NB}, v{KK}'); A(f'v_cmp_le_u32 {sp(S_M+2)}, {NB}, v{KK+1}')
    A(f's_cmp_eq_u32 s{S_ST0}, 0'); A('s_cbranch_scc1 L_E_nostore')
    for k in range(2): A(f'v_min_u32 v{KK+k}, {NB-1}, v{KK+k}')
    for k in range(2): A(f'v_mad_u32_u24 v{KK+k}, v{YY+k}, {NB}, v{KK+k}')
    A(f'v_cmp_le_u32 vcc, {RS}, v{KK}'); A(f'v_cmp_le_u32 {sp(S_A-1+1) if False else sp(66)}, {RS}, v{KK+1}')
    for k in range(2): A(f'v_lshl_add_u32 v{AD+k}, v{AD+k}, 5, v{KK+k}')
    for k in range(2): A(f'v_add_u32 v{YY+k}, {16-RS}, v{AD+k}')
    A(f'v_cndmask_b32 v{AD}, v{AD}, v{YY}, vcc'); A(f'v_cndmask_b32 v{AD+1}, v{AD+1}, v{YY+1}, {sp(66)}')
    for k in range(2): A(f'v_lshlrev_b32 v{AD+k}, 2, v{AD+k}')
    for k in range(2): A(f'ds_read_b32 v{YY+k}, v{AD+k} offset:{TBL}')
    A(f'v_lshrrev_b32 v{T0}, 1, v{TID8}')
    A('s_waitcnt lgkmcnt(0)')
    for k in range(2): rnd(YY+k, YY+k)
    for k in range(2): A(f'v_add_f32 v{YY+k}, v{YY+k}, v{V_HB}')
    for k in range(2): rnd(YY+k, YY+k)
    for k in range(2): A(f'v_mul_f32 v{YY+k}, v{YY+k}, v{GB+k}')
    for k in range(2): rnd(YY+k, YY+k)
    for k in range(2): A(f'v_add_f32 v{YY+k}, v{YY+k}, v{X1+k}')
    if PERT:
        A(f'v_cmp_eq_u32 vcc, 0, v0'); A(f'v_mov_b32 v{T1}, {fx(PERT*0.001)}'); g.nop(1); A(f'v_cndmask_b32 v{T1}, 0, v{T1}, vcc'); A(f'v_add_f32 v{YY}, v{YY}, v{T1}')
    A(f'v_cvt_pk_bf16_f32 v{YY}, v{YY}, v{YY+1}')
    A(f's_andn2_b64 exec, {sp(S_SAVE)}, {sp(S_M)}'); A('s_cbranch_execz L_E_st1')
    A(f'global_store_short v{T0}, v{YY}, {sp(P_OUT)}')
    g.lab('L_E_st1')
    A(f's_andn2_b64 exec, {sp(S_SAVE)}, {sp(S_M+2)}'); A('s_cbranch_execz L_E_st2')
    A(f'global_store_short_d16_hi v{T0}, v{YY}, {sp(P_OUT)} offset:2')
    g.lab('L_E_st2')
    A('s_mov_b64 exec, -1')
    stamp(8)
    A('s_branch L_fin')
    g.lab('L_E_nostore')
    A(f'ds_write_b64 v{TID8}, {vr(HH,2)} offset:{H2V}')
    A(f's_lshr_b32 s{S_A}, s{S_IDX}, 2'); A(f's_cmp_eq_u32 s{S_A}, s{S_WAVE}'); A('s_cbranch_scc0 L_E_b3')
    A(f's_and_b32 s{S_A}, s{S_IDX}, 3'); A(f's_lshl_b32 s{S_A}, s{S_A}, 4')
    A(f's_lshr_b64 {sp(S_M)}, {sp(S_M)}, s{S_A}'); A(f's_lshr_b64 {sp(S_M+2)}, {sp(S_M+2)}, s{S_A}')
    A(f's_and_b32 s{S_M}, s{S_M}, 0xffff'); A(f's_lshl_b32 s{S_M+2}, s{S_M+2}, 16'); A(f's_or_b32 s{S_M}, s{S_M}, s{S_M+2}')
    A(f'v_mov_b32 v{T1}, s{S_M}'); A(f'v_mov_b32 v{T0}, {MISS}')
    A(f'ds_write_b32 v{T0}, v{T1}')
    A('s_branch L_E_b3')
    g.lab('L_E_tb')
    if NOT: A('s_barrier'); A('s_barrier'); A('s_branch L_fin')
    A(f'v_subrev_u32 v{T5}, 320, v0')
    NG = 11
    GR = U
    A(f'v_lshlrev_b32 v{V_ADDR}, 4, v{T5}')
    A(f'v_lshlrev_b32 v{V_ADDR2}, 3, v{T5}')
    A(f'v_add_u32 v{T4}, {10*192*16}, v{V_ADDR}'); A(f'v_min_u32 v{T4}, {2047*16}, v{T4}')
    A(f'v_lshrrev_b32 v{T3}, 1, v{T4}')
    for j in range(NG): A(f's_mov_b64 {sp(16+2*j)}, -1')
    g.lab('L_E_tbpoll')
    for j in range(NG):
        A(f's_mov_b64 exec, {sp(16+2*j)}'); A(f's_cbranch_execz L_E_t{j}')
        A(f's_mov_b32 s{S_T}, {TB + (j*192*16 if j < 10 else 0)}')
        A(f'buffer_load_dwordx4 {vr(GR+4*j,4)}, v{V_ADDR if j < 10 else T4}, {sq(SRD_WS)}, s{S_T} offen sc1')
        g.lab(f'L_E_t{j}')
    A('s_mov_b64 exec, -1')
    A('s_waitcnt vmcnt(0)')
    for j in range(NG): A(f'v_cmp_ne_u64 {sp(16+2*j)}, {sp(S_E0)}, {vr(GR+4*j+2,2)}')
    A(f's_mov_b64 vcc, {sp(16)}')
    for j in range(1, NG): A(f's_or_b64 vcc, vcc, {sp(16+2*j)}')
    retry('L_E_tbpoll', 'L_E_tbok', sleep=6)
    g.lab('L_E_tbok')
    for j in range(10): A(f'ds_write_b64 v{V_ADDR2}, {vr(GR+4*j,2)} offset:{TBL + j*192*8}')
    A(f'ds_write_b64 v{T3}, {vr(GR+40,2)} offset:{TBL}')
    stamp(5)
    A('s_waitcnt lgkmcnt(0)')
    A('s_barrier'); A('s_barrier')
    A('s_branch L_fin')
    g.lab('L_E_b12')
    A(f'v_mov_b32 v{T0}, 0'); A(f'global_load_ushort v{V_HB}, v{T0}, {sp(P_B2)}')
    A('s_waitcnt vmcnt(0)')
    A(f'v_lshlrev_b32 v{V_HB}, 16, v{V_HB}')
    A('s_barrier'); A('s_barrier')
    g.lab('L_E_b3')
    stamp(8)
    A('s_waitcnt lgkmcnt(0)')
    A('s_barrier')
    stamp(9)
    A(f'v_mov_b32 v{T0}, {MISS}')
    A(f'ds_read_b32 v{T1}, v{T0}')
    A('s_waitcnt lgkmcnt(0)')
    A(f'v_readfirstlane_b32 s{S_G}, v{T1}')
    g.lab('L_E_mbit')
    A(f's_cmp_eq_u32 s{S_G}, 0'); A('s_cbranch_scc1 L_fin')
    A(f's_ff1_i32_b32 s{S_I}, s{S_G}')
    A(f's_bitset0_b32 s{S_G}, s{S_I}')
    A(f's_and_b32 s{S_A}, s{S_I}, 15'); A(f's_lshl_b32 s{S_B}, s{S_IDX}, 4'); A(f's_add_u32 s{S_A}, s{S_A}, s{S_B}'); A(f's_lshl_b32 s{S_A}, s{S_A}, 1')
    A(f's_lshr_b32 s{S_B}, s{S_I}, 4'); A(f's_add_u32 s{S_A}, s{S_A}, s{S_B}'); A(f's_lshl_b32 s{S_GRP}, s{S_A}, 2')
    A(f'v_mov_b32 v{V_OPA}, s{S_GRP}')
    A(f'ds_read_b32 v{T2}, v{V_OPA} offset:{H2V}'); A(f'ds_read_b32 v{T4}, v{V_OPA} offset:{X1V}'); A(f'ds_read_b32 v{T5}, v{V_OPA} offset:{GBV}')
    A(f's_mov_b32 s{S_SC}, 1.0'); A(f'v_mov_b32 v{ACC}, 0'); A(f'v_mov_b32 v{ACC+1}, 0')
    A('s_waitcnt lgkmcnt(0)')
    A(f'v_readfirstlane_b32 s{S_A}, v{T2}')
    g.nop(2)
    t0_from(S_A)
    gelu_row(ACC)
    g.nop(3)
    wave_sum2(ACC, ACC+1, T0, T1)
    A(f's_lshl_b32 s{S_B}, s{S_WAVE}, 2'); A(f'v_mov_b32 v{T0}, s{S_B}')
    A(f'ds_write_b32 v{T0}, v{ACC} offset:{YRED}')
    A('s_waitcnt lgkmcnt(0)')
    A('s_barrier')
    A(f'v_mov_b32 v{T0}, 0')
    A(f'ds_read_b128 {vr(Z,4)}, v{T0} offset:{YRED}'); A(f'ds_read_b128 {vr(Z+4,4)}, v{T0} offset:{YRED+16}')
    A('s_waitcnt lgkmcnt(0)')
    A('s_barrier')
    A(f's_cmp_eq_u32 s{S_WAVE}, 0'); A('s_cbranch_scc0 L_E_mbit')
    for a, b in ((0, 1), (2, 3), (4, 5), (6, 7), (0, 2), (4, 6), (0, 4)): A(f'v_add_f32 v{Z+a}, v{Z+a}, v{Z+b}')
    rnd(Z, Z); A(f'v_add_f32 v{Z}, v{Z}, v{V_HB}'); rnd(Z, Z); A(f'v_mul_f32 v{Z}, v{Z}, v{T5}'); rnd(Z, Z); A(f'v_add_f32 v{Z}, v{Z}, v{T4}')
    A(f'v_cvt_pk_bf16_f32 v{Z}, v{Z}, v{Z}')
    A(f'v_lshrrev_b32 v{T0}, 1, v{V_OPA}')
    A('s_mov_b64 exec, 1')
    A(f'global_store_short v{T0}, v{Z}, {sp(P_OUT)}')
    A('s_mov_b64 exec, -1')
    A('s_branch L_E_mbit')
    g.lab('L_fin_done')
    g.lab('L_fin')
    if stamps:
        stamp(10)
        A('s_waitcnt lgkmcnt(0)')
        A(f's_lshl_b32 s{S_A}, s2, 3'); A(f's_add_u32 s{S_A}, s{S_A}, s{S_WAVE}'); A(f's_lshl_b32 s{S_A}, s{S_A}, 7'); A(f's_add_u32 s{S_A}, s{S_A}, {STAMP}')
        A(f's_getreg_b32 s{S_B}, hwreg(HW_REG_HW_ID)'); A(f's_getreg_b32 s{S_C}, hwreg(HW_REG_XCC_ID)')
        for k in range(22): A(f'v_mov_b32 v{R0+k}, s{S_ST+k}')
        A(f'v_mov_b32 v{R0+22}, s{S_B}'); A(f'v_mov_b32 v{R0+23}, s{S_C}')
        A(f'v_mov_b32 v{T0}, 0')
        A('s_mov_b64 exec, 1')
        for k in range(5): A(f'buffer_store_dwordx4 {vr(R0+4*k,4)}, v{T0}, {sq(SRD_WS)}, s{S_A} offen offset:{16*k}')
        A(f'buffer_store_dwordx2 {vr(R0+20,2)}, v{T0}, {sq(SRD_WS)}, s{S_A} offen offset:80')
        A(f'buffer_store_dwordx2 {vr(R0+22,2)}, v{T0}, {sq(SRD_WS)}, s{S_A} offen offset:120')
    g.lab('L_end')
    A('s_endpgm')
    g.lab('L_codeend')
    T = ['.section .rodata,"a"', '.p2align 6', f'.amdhsa_kernel {NAME}_kernel', f'  .amdhsa_next_free_vgpr {NVGPR}', '  .amdhsa_next_free_sgpr 102',
         f'  .amdhsa_accum_offset {NVGPR}', '  .amdhsa_group_segment_fixed_size 0', '  .amdhsa_kernarg_size 120', '  .amdhsa_user_sgpr_count 2',
         '  .amdhsa_user_sgpr_kernarg_segment_ptr 1', '  .amdhsa_system_sgpr_workgroup_id_x 1', '  .amdhsa_float_denorm_mode_32 3', '.end_amdhsa_kernel']
    pre = [f'    s_mov_b64 s[{S_ST+2*k}:{S_ST+2*k+1}], 0' for k in range(11)] if stamps else []
    body = []
    for line in g.L:
        if line.strip() == 'CODE_PREFETCH':
            for j in range(3):
                body.append(f'    v_add_u32 v{T3}, {j*8192}, v{T2}')
                body.append(f'    v_min_u32 v{T3}, L_codeend-{NAME}_kernel-4, v{T3}')
                body.append(f'    global_load_dword v{V_ACC+16}, v{T3}, {sp(S_M)}')
        else: body.append(line)
    return '\n'.join(H + pre + body + T) + '\n'

if __name__ == '__main__':
    out = sys.argv[1]
    kw = {}
    for a in sys.argv[2:]:
        if a == 'stamps': kw['stamps'] = True
        else:
            k, v = a.split('='); kw[k] = int(v)
    open(out, 'w').write(build(**kw))
```
